```python
import torch

def _softmax(x, axis=-1):
    return torch.softmax(x, dim=axis)
def _gelu(x):
    return torch.nn.functional.gelu(x, approximate="tanh")
def _silu(x):
    return torch.nn.functional.silu(x)
def _sigmoid(x):
    return torch.sigmoid(x)
def _layernorm(x, axis=-1, eps=1e-5):
    m = x.mean(dim=axis, keepdim=True)
    v = x.var(dim=axis, keepdim=True, unbiased=False)
    return (x - m) / torch.sqrt(v + eps)
def _scatter_add(tgt, idx, src, axis=0):
    return tgt.clone().index_add_(axis, idx, src)
def _segment_sum(src, seg, n):
    out = torch.zeros((n,) + src.shape[1:], dtype=src.dtype)
    return out.index_add_(0, seg, src)
def _pad(x, pw):
    flat = tuple(v for pair in reversed(pw) for v in pair)
    return torch.nn.functional.pad(x, flat)

kernel_name = 'concat_heads__gqa_block_cached__gqa_block_cached__decode'

def setup_inputs():

    _w = (lambda a: (lambda t: t.to(torch.bfloat16) if t.is_floating_point() else t)(torch.as_tensor(a)))
    def _A_setup():
        B, Sq, D = 1, 1, 512
        Hq, Hkv, Sk, Dh = 32, 32, 4096, 128
        assert Hq % Hkv == 0, (Hq, Hkv)
        return {
            "x": _w((lambda *s: torch.randn(*s, dtype=torch.bfloat16) * 0.8)(B, Sq, D)),
            "k_cache": _w((lambda *s: torch.randn(*s, dtype=torch.bfloat16) * 1.6)(B, Hkv, Sk, Dh)),
            "v_cache": _w((lambda *s: torch.randn(*s, dtype=torch.bfloat16) * 0.2)(B, Hkv, Sk, Dh)),
            "wq": _w((lambda *s: torch.randn(*s, dtype=torch.bfloat16) * 1.6)(D, Hq * Dh) * (D ** -0.5)),
            "wo": _w((lambda *s: torch.randn(*s, dtype=torch.bfloat16) * 0.2)(Hq * Dh, D) * ((Hq * Dh) ** -0.5)),
        }
    _A_in = _A_setup()

    def _B_setup():
        B, Sq, D = 1, 1, 512
        Hq, Hkv, Sk, Dh = 32, 32, 4096, 128
        assert Hq % Hkv == 0, (Hq, Hkv)
        return {
            "x": _w((lambda *s: torch.randn(*s, dtype=torch.bfloat16) * 0.8)(B, Sq, D)),
            "k_cache": _w((lambda *s: torch.randn(*s, dtype=torch.bfloat16) * 1.6)(B, Hkv, Sk, Dh)),
            "v_cache": _w((lambda *s: torch.randn(*s, dtype=torch.bfloat16) * 0.2)(B, Hkv, Sk, Dh)),
            "wq": _w((lambda *s: torch.randn(*s, dtype=torch.bfloat16) * 1.6)(D, Hq * Dh) * (D ** -0.5)),
            "wo": _w((lambda *s: torch.randn(*s, dtype=torch.bfloat16) * 0.2)(Hq * Dh, D) * ((Hq * Dh) ** -0.5)),
        }
    _B_in = _B_setup()

    return {
        "A_x": _A_in["x"],
        "A_k_cache": _A_in["k_cache"],
        "A_v_cache": _A_in["v_cache"],
        "A_wq": _A_in["wq"],
        "A_wo": _A_in["wo"],
        "B_x": _B_in["x"],
        "B_k_cache": _B_in["k_cache"],
        "B_v_cache": _B_in["v_cache"],
        "B_wq": _B_in["wq"],
        "B_wo": _B_in["wo"],
    }

def reference(A_x, A_k_cache, A_v_cache, A_wq, A_wo, B_x, B_k_cache, B_v_cache, B_wq, B_wo):
    def _A_ref(x, k_cache, v_cache, wq, wo):
        B, Sq, D = x.shape
        Hq, Dh = 32, 128
        Hkv = k_cache.shape[1]
        rep = Hq // Hkv
        q = (lambda x, *d: x.permute(*d))((x @ wq).reshape(B, Sq, Hq, Dh), 0, 2, 1, 3)
        k = (lambda x, n, axis: torch.repeat_interleave(x, n, dim=axis))(k_cache, rep, axis=1)
        v = (lambda x, n, axis: torch.repeat_interleave(x, n, dim=axis))(v_cache, rep, axis=1)
        scores = torch.einsum("bhqd,bhkd->bhqk", q, k) * (Dh ** -0.5)
        p = _softmax(scores, axis=-1)
        o = torch.einsum("bhqk,bhkd->bhqd", p, v)
        return (lambda x, *d: x.permute(*d))(o, 0, 2, 1, 3).reshape(B, Sq, Hq * Dh) @ wo

    def _B_ref(x, k_cache, v_cache, wq, wo):
        B, Sq, D = x.shape
        Hq, Dh = 32, 128
        Hkv = k_cache.shape[1]
        rep = Hq // Hkv
        q = (lambda x, *d: x.permute(*d))((x @ wq).reshape(B, Sq, Hq, Dh), 0, 2, 1, 3)
        k = (lambda x, n, axis: torch.repeat_interleave(x, n, dim=axis))(k_cache, rep, axis=1)
        v = (lambda x, n, axis: torch.repeat_interleave(x, n, dim=axis))(v_cache, rep, axis=1)
        scores = torch.einsum("bhqd,bhkd->bhqk", q, k) * (Dh ** -0.5)
        p = _softmax(scores, axis=-1)
        o = torch.einsum("bhqk,bhkd->bhqd", p, v)
        return (lambda x, *d: x.permute(*d))(o, 0, 2, 1, 3).reshape(B, Sq, Hq * Dh) @ wo

    a = _A_ref(A_x, A_k_cache, A_v_cache, A_wq, A_wo)
    b = _B_ref(B_x, B_k_cache, B_v_cache, B_wq, B_wo)
    return torch.concatenate([a, b], axis=-1)
```

```python
import sys
NAME = "concat_heads__gqa_block_cached__gqa_block_cached__decode"
opts = dict(a.split("=") for a in sys.argv[2:])
DIAG = int(opts.get("diag", 0))
NT = opts.get("nt", "nt")
NTW = opts.get("ntw", "")
NT = "" if NT == "none" else " " + NT.replace("+", " ")
NTW = "" if NTW in ("none", "") else " " + NTW.replace("+", " ")
L = []
def e(s=""):
    L.append(s)
def brev(j):
    return int(f"{j:04b}"[::-1], 2)

hdr = open("cdna_kernels/%s.s.ref" % NAME).read().split("\n")
for ln in hdr:
    if ln.startswith("; @launch"):
        e("; @launch grid=(256,1,1) block=(1024,1,1) lds=32768")
        break
    e(ln)
e('.amdgcn_target "amdgcn-amd-amdhsa--gfx950"')
e(".text")
e(f".globl {NAME}_kernel")
e(".p2align 8")
e(f".type {NAME}_kernel,@function")
e(f"{NAME}_kernel:")

SX, SK, SV, SQ, SO, SW, SD = 32, 36, 40, 44, 48, 52, 56
SOUT = 84
sHEAD, sSPL, sPROB, sWAVE, sPID = 60, 61, 62, 63, 64
sT0, sT1, sT2 = 65, 66, 67
sKV = 68
sWQ = 72
sWO0, sWO1 = 73, 74
sSELLO, sSELHI = 75, 76
sM1, sM0 = 78, 80
sCONS = 82
sTS = 90
vL, vKV, vWQ, vWO, vT, vT2 = 0, 1, 2, 3, 4, 5
vM = 6
vX = 10
vA = [14, 18]
vD = 22
vP = 26
vS = 27
vY = 28
vW = 32
vK = 64
L_QP = 0
L_QB = 8192
L_M = 12288
L_L = 12352
L_OP = 12544
L_YP = 21760
L_RED = 29952
WS_ML = 512 * 1024
WS_DIAG = 1024 * 1024

def stamp(i):
    if DIAG:
        e(f"    s_memrealtime s[{sTS+2*i}:{sTS+2*i+1}]")

def r4(b): return f"v[{b}:{b+3}]"
def s4(b): return f"s[{b}:{b+3}]"

stamp(0)
e("    s_cmp_ge_u32 s2, 256")
e("    s_cbranch_scc1 L_end")
e("    s_load_dwordx16 s[4:19], s[0:1], 0")
e("    s_load_dwordx8 s[20:27], s[0:1], 64")
e("    s_load_dwordx2 s[28:29], s[0:1], 96")
e("    v_lshrrev_b32 v4, 6, v0")
e("    v_and_b32 v0, 63, v0                  ; lane")
e(f"    v_readfirstlane_b32 s{sWAVE}, v4")
e(f"    s_lshr_b32 s{sT0}, s2, 5")
e(f"    s_and_b32 s{sT1}, s2, 7")
e(f"    s_lshr_b32 s{sPROB}, s2, 7")
e(f"    s_and_b32 s{sT0}, s{sT0}, 3")
e(f"    s_lshl_b32 s{sT0}, s{sT0}, 3")
e(f"    s_or_b32 s{sHEAD}, s{sT0}, s{sT1}          ; head 0..31")
e(f"    s_bfe_u32 s{sSPL}, s2, 0x20003            ; split 0..3")
e(f"    v_lshlrev_b32 v{vKV}, 4, v0              ; lane*16")
e(f"    v_lshrrev_b32 v{vT}, 4, v0               ; g")
e(f"    v_and_b32 v{vT2}, 15, v0                 ; i")
e(f"    v_lshlrev_b32 v{vT2}, 4, v{vT2}")
e(f"    v_lshl_add_u32 v{vWQ}, v{vT}, 16, v{vT2}     ; g*8*8192 + i*16")
e(f"    v_lshl_add_u32 v{vWO}, v{vT}, 13, v{vT2}     ; g*8*1024 + i*16")
e(f"    v_lshlrev_b32 v{vY}, 4, v{vT}              ; g*16 (x offset)")
e(f"    s_lshl_b32 s{sT0}, s{sWAVE}, 6             ; x soffset")
e(f"    s_lshl_b32 s{sWQ}, s{sWAVE}, 18")
e(f"    s_lshl_b32 s{sT1}, s{sHEAD}, 8")
e(f"    s_add_u32 s{sWQ}, s{sWQ}, s{sT1}")
e(f"    s_mov_b32 s{SX+2}, 1024")
e(f"    s_mov_b32 s{SX+3}, 0x20000")
e(f"    s_mov_b32 s{SQ+2}, 0x400000")
e(f"    s_mov_b32 s{SQ+3}, 0x20000")
e(f"    s_cmp_eq_u32 s{sPROB}, 0")
e("    s_waitcnt lgkmcnt(0)")
e(f"    s_cselect_b64 s[{SX}:{SX+1}], s[4:5], s[14:15]")
e(f"    s_cselect_b64 s[{SQ}:{SQ+1}], s[10:11], s[20:21]")
e(f"    s_cselect_b64 s[{SK}:{SK+1}], s[6:7], s[16:17]")
e(f"    s_cselect_b64 s[{SV}:{SV+1}], s[8:9], s[18:19]")
e(f"    s_cselect_b64 s[{SO}:{SO+1}], s[12:13], s[22:23]")
e(f"    buffer_load_dwordx4 {r4(vX)}, v{vY}, {s4(SX)}, s{sT0} offen")
for j in range(8):
    e(f"    buffer_load_dwordx4 {r4(vW+4*j)}, v{vWQ}, {s4(SQ)}, s{sWQ} offen{NTW}")
    if j < 7:
        e(f"    s_add_u32 s{sWQ}, s{sWQ}, 8192")
e(f"    s_mov_b32 s{SK+2}, 0x2000000")
e(f"    s_mov_b32 s{SK+3}, 0x20000")
e(f"    s_mov_b32 s{SV+2}, 0x2000000")
e(f"    s_mov_b32 s{SV+3}, 0x20000")
e(f"    s_mov_b32 s{SO+2}, 0x400000")
e(f"    s_mov_b32 s{SO+3}, 0x20000")
e(f"    s_mov_b64 s[{SW}:{SW+1}], s[28:29]")
e(f"    s_mov_b32 s{SW+2}, 0x200000")
e(f"    s_mov_b32 s{SW+3}, 0x20000")
e(f"    s_mov_b64 s[{SD}:{SD+1}], s[26:27]")
e(f"    s_mov_b32 s{SD+2}, 256")
e(f"    s_mov_b32 s{SD+3}, 0x20000")
e(f"    s_mov_b64 s[{SOUT}:{SOUT+1}], s[24:25]")
e(f"    s_mov_b32 s{SOUT+2}, 2048")
e(f"    s_mov_b32 s{SOUT+3}, 0x20000")
e(f"    s_lshl_b32 s{sKV}, s{sHEAD}, 20")
e(f"    s_lshl_b32 s{sT1}, s{sSPL}, 18")
e(f"    s_add_u32 s{sKV}, s{sKV}, s{sT1}")
e(f"    s_lshl_b32 s{sT1}, s{sWAVE}, 14")
e(f"    s_add_u32 s{sKV}, s{sKV}, s{sT1}")
for i in range(1, 4):
    e(f"    s_add_u32 s{sKV+i}, s{sKV}, {4096*i}")
e(f"    s_lshl_b32 s{sPID}, s{sPROB}, 5")
e(f"    s_add_u32 s{sPID}, s{sPID}, s{sHEAD}")
e(f"    s_lshl_b32 s{sPID}, s{sPID}, 2")
e(f"    s_add_u32 s{sPID}, s{sPID}, s{sSPL}")
e(f"    s_lshl_b32 s{sT0}, s{sPID}, 11")
e(f"    s_lshl_b32 s{sT1}, s{sWAVE}, 7")
e(f"    s_add_u32 s{sT0}, s{sT0}, s{sT1}")
e(f"    s_lshl_b32 s{sT1}, s{sPID}, 4")
e(f"    s_add_u32 s{sT1}, s{sT1}, {WS_ML}")
e(f"    v_add_u32 v{vY}, s{sT0}, v{vKV}")
e(f"    v_mov_b32 v{vA[0]}, -1")
e(f"    v_mov_b32 v{vA[0]+1}, -1")
e(f"    v_writelane_b32 v{vY}, s{sT1}, 8")
e(f"    v_mov_b32 v{vA[0]+2}, -1")
e(f"    v_mov_b32 v{vA[0]+3}, -1")
e(f"    s_movk_i32 s{sT2}, 0xff")
e(f"    s_cmp_eq_u32 s{sWAVE}, 0")
e(f"    s_cselect_b32 exec_lo, 0x1ff, s{sT2}")
e(f"    s_mov_b32 exec_hi, 0")
e(f"    buffer_store_dwordx4 {r4(vA[0])}, v{vY}, {s4(SW)}, 0 offen sc1")
e(f"    s_mov_b64 exec, -1")
e("    s_barrier")
for j in range(16):
    e(f"    buffer_load_dwordx4 {r4(vK+4*j)}, v{vKV}, {s4(SK)}, s{sKV+j//4} offen offset:{1024*(j%4)}{NT}")
e(f"    v_and_b32 v{vT2}, 1, v0")
e(f"    v_lshlrev_b32 v{vT2}, 4, v{vT2}")
e(f"    s_mov_b32 s{sT0}, 0xffff")
e(f"    v_lshlrev_b32 v{vT2}, v{vT2}, s{sT0}")
e(f"    v_bfe_u32 v{vT}, v0, 1, 2")
for r in range(4):
    e(f"    v_cmp_eq_u32 vcc, {r}, v{vT}")
    e("    s_nop 1")
    e(f"    v_cndmask_b32 v{vM+r}, 0, v{vT2}, vcc")
e(f"    s_mov_b32 s{sSELLO}, 0x01000100")
e(f"    s_mov_b32 s{sSELHI}, 0x03020302")
e(f"    s_mov_b32 s{sM1}, 0xcccccccc")
e(f"    s_mov_b32 s{sM1+1}, 0xcccccccc")
e(f"    s_mov_b32 s{sM0}, 0xaaaaaaaa")
e(f"    s_mov_b32 s{sM0+1}, 0xaaaaaaaa")
e(f"    s_lshl_b32 s{sWO0}, s{sHEAD}, 17")
e(f"    s_lshr_b32 s{sT0}, s{sWAVE}, 2")
e(f"    s_lshl_b32 s{sT0}, s{sT0}, 15")
e(f"    s_add_u32 s{sWO0}, s{sWO0}, s{sT0}")
e(f"    s_and_b32 s{sT0}, s{sWAVE}, 3")
e(f"    s_lshl_b32 s{sT0}, s{sT0}, 8")
e(f"    s_add_u32 s{sWO0}, s{sWO0}, s{sT0}")
e(f"    s_add_u32 s{sWO1}, s{sWO0}, 4096")
stamp(1)

def vload(j, reg):
    e(f"    buffer_load_dwordx4 {r4(reg)}, v{vKV}, {s4(SV)}, s{sKV+j//4} offen offset:{1024*(j%4)}{NT}")
def woload(j, reg):
    e(f"    buffer_load_dwordx4 {r4(reg)}, v{vWO}, {s4(SO)}, s{sWO0+j//4} offen offset:{1024*(j%4)}{NTW}")

for j in range(8):
    A = vA[j % 2]
    e("    s_waitcnt vmcnt(24)")
    e(f"    v_perm_b32 v{vT}, v{vX+j//2}, v{vX+j//2}, s{sSELHI if j%2 else sSELLO}")
    for r in range(4):
        e(f"    v_and_b32 v{A+r}, v{vT}, v{vM+r}")
    e("    s_nop 1")
    c = "0" if j == 0 else r4(vD)
    e(f"    v_mfma_f32_16x16x32_bf16 {r4(vD)}, {r4(A)}, {r4(vW+4*j)}, {c}")
    vload(j, vW+4*j)
e(f"    s_lshl_b32 s{sT0}, s{sWAVE}, 9")
e(f"    v_add_u32 v{vT}, s{sT0}, v{vKV}")
e(f"    v_lshrrev_b32 v{vT2}, 4, v0")
e(f"    v_and_b32 v{vY}, 15, v0")
e(f"    v_lshlrev_b32 v{vY}, 4, v{vY}              ; i*16")
e(f"    v_lshl_add_u32 v{vY+1}, v{vT2}, 11, v{vY}    ; g*2048 + i*16")
e(f"    s_lshl_b32 s{sT0}, s{sWAVE}, 8")
e(f"    s_add_u32 s{sT0}, s{sT0}, {L_QB}")
e(f"    v_add_u32 v{vY}, s{sT0}, v{vY}")
e(f"    v_lshl_add_u32 v{vY+2}, v{vT2}, 2, v{vY}")
e("    s_mov_b32 exec_hi, 0")
e(f"    ds_write_b128 v{vT}, {r4(vD)} offset:{L_QP}")
e("    s_mov_b32 exec_hi, -1")
e("    s_waitcnt lgkmcnt(0)")
e("    s_barrier")
a, b = vA[0], vA[1]
e(f"    ds_read_b128 {r4(a)}, v{vY+1} offset:{L_QP}")
e(f"    ds_read_b128 {r4(b)}, v{vY+1} offset:{L_QP+256}")
e(f"    ds_read_b128 {r4(vD)}, v{vY+1} offset:{L_QP+512}")
e(f"    ds_read_b128 {r4(vX)}, v{vY+1} offset:{L_QP+512+256}")
for k in (1, 2, 3):
    e("    s_waitcnt lgkmcnt(1)")
    for r in range(4):
        e(f"    v_add_f32 v{a+r}, v{a+r}, v{vD+r}")
    if k < 3:
        e(f"    ds_read_b128 {r4(vD)}, v{vY+1} offset:{L_QP+512*(k+1)}")
        e("    s_waitcnt lgkmcnt(1)")
    else:
        e("    s_waitcnt lgkmcnt(0)")
    for r in range(4):
        e(f"    v_add_f32 v{b+r}, v{b+r}, v{vX+r}")
    if k < 3:
        e(f"    ds_read_b128 {r4(vX)}, v{vY+1} offset:{L_QP+512*(k+1)+256}")
e("    s_nop 1")
for r in range(4):
    e(f"    v_permlane32_swap_b32 v{a+r}, v{b+r}")
for r in range(4):
    e(f"    v_add_f32 v{a+r}, v{a+r}, v{b+r}")
e("    s_nop 1")
e(f"    v_permlane16_swap_b32 v{a}, v{a+2}")
e(f"    v_permlane16_swap_b32 v{a+1}, v{a+3}")
e(f"    v_add_f32 v{a}, v{a}, v{a+2}")
e(f"    v_add_f32 v{a+1}, v{a+1}, v{a+3}")
e(f"    v_cvt_pk_bf16_f32 v{a}, v{a}, v{a+1}")
e(f"    ds_write_b32 v{vY+2}, v{a}")
e(f"    ds_read_b128 {r4(vX)}, v{vY}")
e("    s_waitcnt lgkmcnt(0)")
stamp(2)

S = [14, 15]; T = [16, 17]; U = [18, 19]; Wd = [20, 21]
DPP = "row_mask:0xf bank_mask:"
for j in range(16):
    s = S[j % 2]
    e("    s_waitcnt vmcnt(23)")
    kb = vK + 4*j
    e(f"    v_dot2_f32_bf16 v{s}, v{kb}, v{vX}, 0")
    for r in range(1, 4):
        e(f"    v_dot2_f32_bf16 v{s}, v{kb+r}, v{vX+r}, v{s}")
    if j < 8:
        vload(8 + j, kb)
    else:
        woload(j - 8, kb)
    if j % 2 == 1:
        t = T[(j//2) % 2]
        e("    s_nop 1")
        e(f"    v_add_f32_dpp v{t}, v{S[0]}, v{S[0]} row_ror:8 {DPP}0x3")
        e(f"    v_add_f32_dpp v{t}, v{S[1]}, v{S[1]} row_ror:8 {DPP}0xc")
    if j % 4 == 3:
        u = U[(j//4) % 2]
        e(f"    v_add_f32_dpp v{u}, v{T[0]}, v{T[0]} row_half_mirror {DPP}0x5")
        e("    s_nop 0")
        e(f"    v_add_f32_dpp v{u}, v{T[1]}, v{T[1]} row_half_mirror {DPP}0xa")
    if j % 8 == 7:
        w = Wd[j//8]
        e(f"    v_add_f32_dpp v{vT}, v{U[0]}, v{U[0]} quad_perm:[2,3,0,1] {DPP}0xf")
        e("    s_nop 0")
        e(f"    v_add_f32_dpp v{vT2}, v{U[1]}, v{U[1]} quad_perm:[2,3,0,1] {DPP}0xf")
        e(f"    v_cndmask_b32 v{w}, v{vT}, v{vT2}, s[{sM1}:{sM1+1}]")
e(f"    v_add_f32_dpp v{vT}, v{Wd[0]}, v{Wd[0]} quad_perm:[1,0,3,2] {DPP}0xf")
e("    s_nop 0")
e(f"    v_add_f32_dpp v{vT2}, v{Wd[1]}, v{Wd[1]} quad_perm:[1,0,3,2] {DPP}0xf")
e(f"    v_cndmask_b32 v{vS}, v{vT}, v{vT2}, s[{sM0}:{sM0+1}]")
e(f"    v_cvt_pk_bf16_f32 v{vS}, v{vS}, v{vS}")
e(f"    v_and_b32 v{vS}, 0xffff0000, v{vS}")
e(f"    v_mul_f32 v{vS}, 0x3db504f3, v{vS}")
e(f"    v_cvt_pk_bf16_f32 v{vS}, v{vS}, v{vS}")
e(f"    v_and_b32 v{vS}, 0xffff0000, v{vS}")

def row_reduce(op, dst, src):
    e("    s_nop 1")
    e(f"    {op}_dpp v{dst}, v{src}, v{src} row_ror:8 {DPP}0xf")
    for n in (4, 2, 1):
        e("    s_nop 1")
        e(f"    {op}_dpp v{dst}, v{dst}, v{dst} row_ror:{n} {DPP}0xf")
def xrow_reduce(op, dst, tmp):
    for sw in ("16", "32"):
        e(f"    v_mov_b32 v{tmp}, v{dst}")
        e("    s_nop 1")
        e(f"    v_permlane{sw}_swap_b32 v{dst}, v{tmp}")
        e(f"    {op} v{dst}, v{dst}, v{tmp}")
row_reduce("v_max_f32", vT, vS)
xrow_reduce("v_max_f32", vT, vT2)
e(f"    s_lshl_b32 s{sT0}, s{sWAVE}, 2")
e(f"    v_mov_b32 v{vY}, s{sT0}")
e(f"    v_and_b32 v{vY+1}, 15, v0")
e(f"    v_lshlrev_b32 v{vY+1}, 2, v{vY+1}          ; i*4")
e(f"    ds_write_b32 v{vY}, v{vT} offset:{L_M}")
e("    s_waitcnt lgkmcnt(0)")
e("    s_barrier")
e(f"    ds_read_b32 v{vT}, v{vY+1} offset:{L_M}")
e(f"    s_cmp_lg_u32 s{sWAVE}, 0")
e("    s_cbranch_scc1 L_noadd")
e(f"    s_lshl_b32 s{sT0}, s{sPROB}, 7")
e(f"    v_mov_b32 v{vY+2}, s{sT0}")
e(f"    v_mov_b32 v{vT2}, 1")
e("    s_mov_b64 exec, 1")
e(f"    buffer_atomic_add v{vT2}, v{vY+2}, {s4(SD)}, 0 offen sc1")
e("    s_mov_b64 exec, -1")
e("L_noadd:")
e("    s_waitcnt lgkmcnt(0)")
vMX = vY + 3
row_reduce("v_max_f32", vMX, vT)
e(f"    v_sub_f32 v{vS}, v{vS}, v{vMX}")
e(f"    v_mul_f32 v{vS}, 0x3fb8aa3b, v{vS}")
e(f"    v_exp_f32 v{vS}, v{vS}")
e("    s_nop 0")
e(f"    v_cvt_pk_bf16_f32 v{vP}, v{vS}, v{vS}")
row_reduce("v_add_f32", vT, vS)
xrow_reduce("v_add_f32", vT, vT2)
e(f"    ds_write_b32 v{vY}, v{vT} offset:{L_L}")
stamp(3)

def bc_mfma(src, lane, data, j, first):
    A = vA[j % 2]
    for r in range(4):
        e(f"    v_and_b32_dpp v{A+r}, v{src}, v{vM+r} row_newbcast:{lane} {DPP}0xf")
def vreg(j): return vW + 4*j if j < 8 else vK + 4*(j-8)
bc_mfma(vP, brev(0), None, 0, True)
for j in range(16):
    if j < 15:
        bc_mfma(vP, brev(j+1), None, j+1, False)
    e(f"    s_waitcnt vmcnt({23-j})")
    if j == 15:
        e("    s_nop 0")
    c = "0" if j == 0 else r4(vD)
    e(f"    v_mfma_f32_16x16x32_bf16 {r4(vD)}, {r4(vA[j%2])}, {r4(vreg(j))}, {c}")
e(f"    s_and_b32 s{sT0}, s{sHEAD}, 1")
e(f"    s_or_b32 s{sCONS}, s{sT0}, s{sSPL}          ; 0 -> consumer")
e(f"    s_or_b32 s{sT0}, s{sCONS}, s{sWAVE}")
e(f"    s_cmp_lg_u32 s{sT0}, 0")
e("    s_cbranch_scc1 L_nocnt")
e(f"    buffer_load_dword v{vS}, v{vY+2}, {s4(SD)}, 0 offen sc1")
e("L_nocnt:")
e(f"    s_mul_i32 s{sT0}, s{sWAVE}, 576")
e(f"    v_lshrrev_b32 v{vT}, 4, v0               ; g")
e(f"    v_lshlrev_b32 v{vT2}, 5, v{vT}")
e(f"    v_add3_u32 v{vT2}, v{vT2}, v{vKV}, s{sT0}")
e(f"    s_lshr_b32 s{sT0}, s{sWAVE}, 2")
e(f"    s_lshl_b32 s{sT0}, s{sT0}, 6")
e(f"    v_lshl_add_u32 v{vT}, v{vT}, 4, s{sT0}")
e(f"    v_and_b32 v{vX}, 3, v0")
e(f"    v_lshl_add_u32 v{vT}, v{vX}, 2, v{vT}")
e(f"    v_bfe_u32 v{vX}, v0, 2, 1")
e(f"    v_mul_u32_u24 v{vX}, 288, v{vX}")
e(f"    v_bfe_u32 v{vX+1}, v0, 3, 1")
e(f"    v_mul_u32_u24 v{vX+1}, 576, v{vX+1}")
e(f"    v_add3_u32 v{vT}, v{vT}, v{vX}, v{vX+1}")
e("    s_mov_b32 exec_hi, 0")
e(f"    ds_write_b128 v{vT2}, {r4(vD)} offset:{L_OP}")
e("    s_mov_b32 exec_hi, -1")
e("    s_waitcnt lgkmcnt(0)")
e("    s_barrier")
stamp(4)
for k in range(8):
    e(f"    ds_read_b32 v{vW+k}, v{vT} offset:{L_OP+1152*k}")
e(f"    ds_read_b32 v{vW+8}, v{vY+1} offset:{L_L}")
e("    s_waitcnt lgkmcnt(5)")
e(f"    v_add_f32 v{vW}, v{vW}, v{vW+1}")
e(f"    v_add_f32 v{vW+2}, v{vW+2}, v{vW+3}")
e("    s_waitcnt lgkmcnt(1)")
e(f"    v_add_f32 v{vW+4}, v{vW+4}, v{vW+5}")
e(f"    v_add_f32 v{vW+6}, v{vW+6}, v{vW+7}")
e(f"    v_add_f32 v{vW}, v{vW}, v{vW+2}")
e(f"    v_add_f32 v{vW+4}, v{vW+4}, v{vW+6}")
e(f"    v_add_f32 v{vW}, v{vW}, v{vW+4}")
e("    s_nop 1")
e(f"    v_add_f32_dpp v{vW}, v{vW}, v{vW} row_ror:8 {DPP}0xf")
e(f"    v_cvt_pk_bf16_f32 v{vP}, v{vW}, v{vW}")
e(f"    s_cmp_lg_u32 s{sWAVE}, 15")
e("    s_cbranch_scc1 L_noml")
e("    s_waitcnt lgkmcnt(0)")
row_reduce("v_add_f32", vW+9, vW+8)
e(f"    v_min_u32 v{vW+10}, -2, v{vMX}")
e(f"    v_min_u32 v{vW+11}, -2, v{vW+9}")
e(f"    s_lshl_b32 s{sT1}, s{sPID}, 4")
e(f"    s_add_u32 s{sT1}, s{sT1}, {WS_ML}")
e(f"    v_mov_b32 v{vW+9}, s{sT1}")
e("    s_mov_b64 exec, 1")
e(f"    buffer_store_dwordx2 v[{vW+10}:{vW+11}], v{vW+9}, {s4(SW)}, 0 offen sc1")
e("    s_mov_b64 exec, -1")
e("L_noml:")
e("    s_nop 0")
bc_mfma(vP, 0, None, 0, True)
for j in range(8):
    if j < 7:
        bc_mfma(vP, j+1, None, j+1, False)
    e(f"    s_waitcnt vmcnt({7-j})")
    if j == 7:
        e("    s_nop 0")
    c = "0" if j == 0 else r4(vD)
    e(f"    v_mfma_f32_16x16x32_bf16 {r4(vD)}, {r4(vA[j%2])}, {r4(vK+32+4*j)}, {c}")
e(f"    s_lshl_b32 s{sT0}, s{sWAVE}, 9")
e(f"    v_and_b32 v{vT}, 15, v0")
e(f"    v_lshlrev_b32 v{vT}, 5, v{vT}")
e(f"    v_and_b32 v{vT2}, 16, v0")
e(f"    v_add3_u32 v{vT}, v{vT}, v{vT2}, s{sT0}")
e(f"    s_or_b32 s{sT0}, s{sCONS}, s{sWAVE}")
e(f"    s_cmp_lg_u32 s{sT0}, 0")
e("    s_cbranch_scc1 L_cntok")
e("L_cnt:")
e(f"    v_readfirstlane_b32 s{sT0}, v{vS}")
e(f"    s_cmp_ge_u32 s{sT0}, 128")
e("    s_cbranch_scc1 L_cntok")
e(f"    buffer_load_dword v{vS}, v{vY+2}, {s4(SD)}, 0 offen sc1")
e("    s_waitcnt vmcnt(0)")
e("    s_branch L_cnt")
e("L_cntok:")
e("    s_nop 1")
e("    s_mov_b32 exec_hi, 0")
e(f"    ds_write_b128 v{vT}, {r4(vD)} offset:{L_YP}")
e("    s_mov_b32 exec_hi, -1")
e("    s_waitcnt lgkmcnt(0)")
e("    s_barrier")
e(f"    s_cmp_gt_u32 s{sWAVE}, 1")
e("    s_cbranch_scc1 L_published")
e(f"    s_lshl_b32 s{sT0}, s{sWAVE}, 10")
e(f"    v_add_u32 v{vT}, s{sT0}, v{vKV}")
for k in range(4):
    e(f"    ds_read_b128 {r4(vW+4*k)}, v{vT} offset:{L_YP+2048*k}")
e(f"    s_lshl_b32 s{sT0}, s{sPID}, 11")
e("    s_waitcnt lgkmcnt(2)")
for r in range(4):
    e(f"    v_add_f32 v{vW+r}, v{vW+r}, v{vW+4+r}")
e("    s_waitcnt lgkmcnt(0)")
for r in range(4):
    e(f"    v_add_f32 v{vW+8+r}, v{vW+8+r}, v{vW+12+r}")
for r in range(4):
    e(f"    v_add_f32 v{vW+r}, v{vW+r}, v{vW+8+r}")
for r in range(4):
    e(f"    v_min_u32 v{vW+r}, -2, v{vW+r}")
e(f"    buffer_store_dwordx4 {r4(vW)}, v{vT}, {s4(SW)}, s{sT0} offen sc1")
e("L_published:")
stamp(5)
if DIAG:
    e(f"    s_cmp_lg_u32 s{sWAVE}, 0")
    e("    s_cbranch_scc1 L_nodiag")
    e("    s_waitcnt lgkmcnt(0)")
    for i in range(6):
        e(f"    v_writelane_b32 v{vK}, s{sTS+2*i}, {i}")
    e(f"    s_getreg_b32 s{sT0}, hwreg(HW_REG_XCC_ID)")
    e(f"    v_writelane_b32 v{vK}, s{sT0}, 7")
    e(f"    s_lshl_b32 s{sT0}, s2, 6")
    e(f"    s_add_u32 s{sT0}, s{sT0}, {WS_DIAG}")
    e(f"    v_lshlrev_b32 v{vK+1}, 2, v0")
    e("    s_mov_b64 exec, 0xbf")
    e(f"    buffer_store_dword v{vK}, v{vK+1}, {s4(SW)}, s{sT0} offen")
    e("    s_mov_b64 exec, -1")
    e("L_nodiag:")
e(f"    s_cmp_lg_u32 s{sCONS}, 0")
e("    s_cbranch_scc1 L_end")
e(f"    s_lshl_b32 s{sT0}, s{sPROB}, 4")
e(f"    s_add_u32 s{sT0}, s{sT0}, s{sWAVE}")
e(f"    s_lshl_b32 s{sT0}, s{sT0}, 3")
e(f"    v_lshrrev_b32 v{vT}, 3, v0")
e(f"    v_add_u32 v{vT}, s{sT0}, v{vT}              ; p")
e(f"    v_lshlrev_b32 v{vT2}, 4, v{vT}")
e(f"    v_and_b32 v{vX}, 7, v0")
e(f"    v_lshlrev_b32 v{vX}, 4, v{vX}")
e(f"    v_lshl_add_u32 v{vT}, v{vT}, 11, v{vX}       ; y offset")
e(f"    s_lshl_b32 s{sT0}, s{sHEAD}, 6             ; cons*128")
e(f"    s_mov_b32 s{sT1}, {WS_ML}")
Y = vK + 8; ML = vK + 12
e("L_poll:")
e(f"    buffer_load_dwordx4 {r4(Y)}, v{vT}, {s4(SW)}, s{sT0} offen sc1")
e(f"    buffer_load_dwordx2 v[{ML}:{ML+1}], v{vT2}, {s4(SW)}, s{sT1} offen sc1")
e("    s_waitcnt vmcnt(0)")
e(f"    v_max3_u32 v{vX}, v{Y}, v{Y+1}, v{Y+2}")
e(f"    v_max3_u32 v{vX+1}, v{Y+3}, v{ML}, v{ML+1}")
e(f"    v_max_u32 v{vX}, v{vX}, v{vX+1}")
e(f"    v_cmp_eq_u32 vcc, -1, v{vX}")
e("    s_cbranch_vccnz L_poll")
e(f"    v_max_f32_dpp v{vX}, v{ML}, v{ML} row_ror:8 {DPP}0xf")
e(f"    v_mov_b32 v{vX+1}, v{vX}")
e("    s_nop 1")
e(f"    v_permlane16_swap_b32 v{vX}, v{vX+1}")
e(f"    v_max_f32 v{vX}, v{vX}, v{vX+1}")
e(f"    v_sub_f32 v{vX}, v{ML}, v{vX}")
e(f"    v_mul_f32 v{vX}, 0x3fb8aa3b, v{vX}")
e(f"    v_exp_f32 v{vX}, v{vX}")
e("    s_nop 0")
e(f"    v_mul_f32 v{vX+1}, v{vX}, v{ML+1}")
e("    s_nop 1")
e(f"    v_add_f32_dpp v{vX+1}, v{vX+1}, v{vX+1} row_ror:8 {DPP}0xf")
e(f"    v_mov_b32 v{vX+2}, v{vX+1}")
e("    s_nop 1")
e(f"    v_permlane16_swap_b32 v{vX+1}, v{vX+2}")
e(f"    v_add_f32 v{vX+1}, v{vX+1}, v{vX+2}")
e(f"    v_rcp_f32 v{vX+1}, v{vX+1}")
e("    s_nop 0")
e(f"    v_mul_f32 v{vX}, v{vX}, v{vX+1}")
for r in range(4):
    e(f"    v_mul_f32 v{Y+r}, v{Y+r}, v{vX}")
for r in range(4):
    e(f"    v_add_f32_dpp v{Y+r}, v{Y+r}, v{Y+r} row_ror:8 {DPP}0xf")
e(f"    v_permlane16_swap_b32 v{Y}, v{Y+1}")
e("    s_nop 0")
e(f"    v_permlane16_swap_b32 v{Y+2}, v{Y+3}")
e(f"    v_add_f32 v{Y}, v{Y}, v{Y+1}")
e(f"    v_add_f32 v{Y+2}, v{Y+2}, v{Y+3}")
e(f"    s_lshl_b32 s{sT0}, s{sWAVE}, 7")
e(f"    v_and_b32 v{vT}, 7, v0")
e(f"    v_lshrrev_b32 v{vT2}, 4, v0")
e(f"    v_permlane32_swap_b32 v{Y}, v{Y+2}")
e(f"    v_lshl_add_u32 v{vT}, v{vT}, 2, v{vT2}")
e(f"    v_lshl_add_u32 v{vT}, v{vT}, 2, s{sT0}")
e(f"    v_add_f32 v{Y}, v{Y}, v{Y+2}")
e(f"    ds_write_b32 v{vT}, v{Y} offset:{L_RED}")
e("    s_waitcnt lgkmcnt(0)")
e("    s_barrier")
e(f"    s_cmp_lg_u32 s{sWAVE}, 0")
e("    s_cbranch_scc1 L_end")
e(f"    v_and_b32 v{vT}, 31, v0")
e(f"    v_lshrrev_b32 v{vT2}, 5, v0")
e(f"    v_lshlrev_b32 v{vT2}, 10, v{vT2}")
e(f"    v_lshl_add_u32 v{vT2}, v{vT}, 2, v{vT2}")
for k in range(8):
    e(f"    ds_read_b32 v{vW+k}, v{vT2} offset:{L_RED+128*k}")
e(f"    s_lshl_b32 s{sT0}, s{sPROB}, 10")
e(f"    s_lshl_b32 s{sT1}, s{sHEAD}, 5             ; cons*64")
e(f"    s_add_u32 s{sT0}, s{sT0}, s{sT1}")
e(f"    v_lshlrev_b32 v{vT}, 1, v{vT}")
e("    s_waitcnt lgkmcnt(4)")
e(f"    v_add_f32 v{vW}, v{vW}, v{vW+1}")
e(f"    v_add_f32 v{vW+2}, v{vW+2}, v{vW+3}")
e("    s_waitcnt lgkmcnt(0)")
e(f"    v_add_f32 v{vW+4}, v{vW+4}, v{vW+5}")
e(f"    v_add_f32 v{vW+6}, v{vW+6}, v{vW+7}")
e(f"    v_add_f32 v{vW}, v{vW}, v{vW+2}")
e(f"    v_add_f32 v{vW+4}, v{vW+4}, v{vW+6}")
e(f"    v_add_f32 v{vW}, v{vW}, v{vW+4}")
e(f"    v_mov_b32 v{vW+1}, v{vW}")
e("    s_nop 1")
e(f"    v_permlane32_swap_b32 v{vW}, v{vW+1}")
e(f"    v_add_f32 v{vW}, v{vW}, v{vW+1}")
e(f"    v_cvt_pk_bf16_f32 v{vW}, v{vW}, v{vW}")
e("    s_mov_b32 exec_hi, 0")
e(f"    buffer_store_short v{vW}, v{vT}, {s4(SOUT)}, s{sT0} offen")
if DIAG:
    e(f"    s_memrealtime s[{sTS}:{sTS+1}]")
    e("    s_waitcnt lgkmcnt(0)")
    e(f"    v_mov_b32 v{vK}, s{sTS}")
    e(f"    s_lshl_b32 s{sT0}, s2, 6")
    e(f"    s_add_u32 s{sT0}, s{sT0}, {WS_DIAG+24}")
    e(f"    v_mov_b32 v{vK+1}, 0")
    e("    s_mov_b64 exec, 1")
    e(f"    buffer_store_dword v{vK}, v{vK+1}, {s4(SW)}, s{sT0} offen")
e("L_end:")
e("    s_endpgm")
e('.section .rodata,"a"')
e(".p2align 6")
e(f".amdhsa_kernel {NAME}_kernel")
e("  .amdhsa_next_free_vgpr 128")
e("  .amdhsa_next_free_sgpr 102")
e("  .amdhsa_accum_offset 128")
e("  .amdhsa_group_segment_fixed_size 0")
e("  .amdhsa_kernarg_size 104")
e("  .amdhsa_user_sgpr_count 2")
e("  .amdhsa_user_sgpr_kernarg_segment_ptr 1")
e("  .amdhsa_system_sgpr_workgroup_id_x 1")
e(".end_amdhsa_kernel")
open(sys.argv[1], "w").write("\n".join(L) + "\n")
```

```python
import sys
NAME = "concat_heads__gqa_block_cached__gqa_block_cached__decode"
opts = dict(a.split("=") for a in sys.argv[2:])
DIAG = int(opts.get("diag", 0))
NT = opts.get("nt", "nt")
NTW = opts.get("ntw", "")
NT = "" if NT == "none" else " " + NT.replace("+", " ")
NTW = "" if NTW in ("none", "") else " " + NTW.replace("+", " ")
PAT = int(opts.get("p", 0)); ROT = int(opts.get("r", 0)); WQX = int(opts.get("wqx", 0)); WOX = int(opts.get("wox", 0))
L = []
def e(s=""):
    L.append(s)
def brev(j):
    return int(f"{j:04b}"[::-1], 2)

hdr = open("cdna_kernels/%s.s.ref" % NAME).read().split("\n")
for ln in hdr:
    if ln.startswith("; @launch"):
        e("; @launch grid=(256,1,1) block=(1024,1,1) lds=32768")
        break
    e(ln)
e('.amdgcn_target "amdgcn-amd-amdhsa--gfx950"')
e(".text")
e(f".globl {NAME}_kernel")
e(".p2align 8")
e(f".type {NAME}_kernel,@function")
e(f"{NAME}_kernel:")

SX, SK, SV, SQ, SO, SW, SD = 32, 36, 40, 44, 48, 52, 56
SOUT = 84
sHEAD, sSPL, sPROB, sWAVE, sPID = 60, 61, 62, 63, 64
sT0, sT1, sT2 = 65, 66, 67
sKV = 68
sWQ = 72
sWO0, sWO1 = 73, 74
sSELLO, sSELHI = 75, 76
sM1, sM0 = 78, 80
sCONS = 82
sTS = 90
vL, vKV, vWQ, vWO, vT, vT2 = 0, 1, 2, 3, 4, 5
vM = 6
vX = 10
vA = [14, 18]
vD = 22
vP = 26
vS = 27
vY = 28
vW = 32
vK = 64
L_QP = 0
L_QB = 8192
L_M = 12288
L_L = 12352
L_OP = 12544
L_YP = 21760
L_RED = 29952
WS_ML = 512 * 1024
WS_DIAG = 1024 * 1024

def stamp(i):
    if DIAG:
        e(f"    s_memrealtime s[{sTS+2*i}:{sTS+2*i+1}]")

def r4(b): return f"v[{b}:{b+3}]"
def s4(b): return f"s[{b}:{b+3}]"

stamp(0)
e("    s_cmp_ge_u32 s2, 256")
e("    s_cbranch_scc1 L_end")
e("    s_load_dwordx16 s[4:19], s[0:1], 0")
e("    s_load_dwordx8 s[20:27], s[0:1], 64")
e("    s_load_dwordx2 s[28:29], s[0:1], 96")
e("    v_lshrrev_b32 v4, 6, v0")
e("    v_and_b32 v0, 63, v0                  ; lane")
e(f"    v_readfirstlane_b32 s{sWAVE}, v4")
e(f"    s_lshr_b32 s{sT0}, s2, 5")
e(f"    s_and_b32 s{sT1}, s2, 7")
e(f"    s_lshr_b32 s{sPROB}, s2, 7")
e(f"    s_and_b32 s{sT0}, s{sT0}, 3")
e(f"    s_lshl_b32 s{sT0}, s{sT0}, 3")
e(f"    s_or_b32 s{sHEAD}, s{sT0}, s{sT1}          ; head 0..31")
e(f"    s_bfe_u32 s{sSPL}, s2, 0x20003            ; split 0..3")
e(f"    v_lshlrev_b32 v{vKV}, 4, v0              ; lane*16")
e(f"    v_lshrrev_b32 v{vT}, 4, v0               ; g")
e(f"    v_and_b32 v{vT2}, 15, v0                 ; i")
e(f"    v_lshlrev_b32 v{vT2}, 4, v{vT2}")
e(f"    v_lshl_add_u32 v{vWQ}, v{vT}, 16, v{vT2}     ; g*8*8192 + i*16")
e(f"    v_lshl_add_u32 v{vWO}, v{vT}, 13, v{vT2}     ; g*8*1024 + i*16")
e(f"    v_lshlrev_b32 v{vY}, 4, v{vT}              ; g*16 (x offset)")
e(f"    s_lshl_b32 s{sT0}, s{sWAVE}, 6             ; x soffset")
e(f"    s_lshl_b32 s{sWQ}, s{sWAVE}, 18")
e(f"    s_lshl_b32 s{sT1}, s{sHEAD}, 8")
e(f"    s_add_u32 s{sWQ}, s{sWQ}, s{sT1}")
e(f"    s_mov_b32 s{SX+2}, 1024")
e(f"    s_mov_b32 s{SX+3}, 0x20000")
e(f"    s_mov_b32 s{SQ+2}, 0x400000")
e(f"    s_mov_b32 s{SQ+3}, 0x20000")
e(f"    s_cmp_eq_u32 s{sPROB}, 0")
e("    s_waitcnt lgkmcnt(0)")
e(f"    s_cselect_b64 s[{SX}:{SX+1}], s[4:5], s[14:15]")
e(f"    s_cselect_b64 s[{SQ}:{SQ+1}], s[10:11], s[20:21]")
e(f"    s_cselect_b64 s[{SK}:{SK+1}], s[6:7], s[16:17]")
e(f"    s_cselect_b64 s[{SV}:{SV+1}], s[8:9], s[18:19]")
e(f"    s_cselect_b64 s[{SO}:{SO+1}], s[12:13], s[22:23]")
e(f"    buffer_load_dwordx4 {r4(vX)}, v{vY}, {s4(SX)}, s{sT0} offen")
for j in range(8):
    e(f"    buffer_load_dwordx4 {r4(vW+4*j)}, v{vWQ}, {s4(SQ)}, s{sWQ} offen{NTW}")
    if j < 7:
        e(f"    s_add_u32 s{sWQ}, s{sWQ}, {8192 if not (WQX and j == 1) else 0x800000}")
e(f"    s_mov_b32 s{SK+2}, 0x2000000")
e(f"    s_mov_b32 s{SK+3}, 0x20000")
e(f"    s_mov_b32 s{SV+2}, 0x2000000")
e(f"    s_mov_b32 s{SV+3}, 0x20000")
e(f"    s_mov_b32 s{SO+2}, 0x400000")
e(f"    s_mov_b32 s{SO+3}, 0x20000")
e(f"    s_mov_b64 s[{SW}:{SW+1}], s[28:29]")
e(f"    s_mov_b32 s{SW+2}, 0x200000")
e(f"    s_mov_b32 s{SW+3}, 0x20000")
e(f"    s_mov_b64 s[{SD}:{SD+1}], s[26:27]")
e(f"    s_mov_b32 s{SD+2}, 256")
e(f"    s_mov_b32 s{SD+3}, 0x20000")
e(f"    s_mov_b64 s[{SOUT}:{SOUT+1}], s[24:25]")
e(f"    s_mov_b32 s{SOUT+2}, 2048")
e(f"    s_mov_b32 s{SOUT+3}, 0x20000")
shs, shw, shj = [(18, 14, 10), (18, 10, 14), (14, 10, 16)][PAT]
e(f"    s_lshl_b32 s{sKV}, s{sHEAD}, 20")
e(f"    s_lshl_b32 s{sT1}, s{sSPL}, {shs}")
e(f"    s_add_u32 s{sKV}, s{sKV}, s{sT1}")
e(f"    s_lshl_b32 s{sT1}, s{sWAVE}, {shw}")
e(f"    s_add_u32 s{sKV}, s{sKV}, s{sT1}")
if ROT == 0:
    e(f"    s_mov_b32 s{sT1}, 0")
elif ROT == 1:
    e(f"    s_lshl_b32 s{sT1}, s{sPROB}, 3")
    e(f"    s_add_u32 s{sT1}, s{sT1}, s{sHEAD}")
elif ROT == 2:
    e(f"    s_lshr_b32 s{sT1}, s2, 3")
    e(f"    s_add_u32 s{sT1}, s{sT1}, s2")
    e(f"    s_add_u32 s{sT1}, s{sT1}, s{sWAVE}")
    e(f"    s_mul_i32 s{sT1}, s{sT1}, 5")
elif ROT == 3:
    e(f"    s_lshl_b32 s{sT1}, s{sPROB}, 3")
    e(f"    s_add_u32 s{sT1}, s{sT1}, s{sHEAD}")
    e(f"    s_add_u32 s{sT1}, s{sT1}, s{sWAVE}")
e(f"    s_and_b32 s{sT1}, s{sT1}, 15")
e(f"    s_lshl_b32 s{sT1}, s{sT1}, {shj}")
for i in range(16):
    e(f"    s_add_u32 s{4+i}, s{sKV}, s{sT1}")
    if i < 15:
        e(f"    s_add_u32 s{sT1}, s{sT1}, {1 << shj}")
        e(f"    s_and_b32 s{sT1}, s{sT1}, {15 << shj}")
e(f"    s_lshl_b32 s{sPID}, s{sPROB}, 5")
e(f"    s_add_u32 s{sPID}, s{sPID}, s{sHEAD}")
e(f"    s_lshl_b32 s{sPID}, s{sPID}, 2")
e(f"    s_add_u32 s{sPID}, s{sPID}, s{sSPL}")
e(f"    s_lshl_b32 s{sT0}, s{sPID}, 11")
e(f"    s_lshl_b32 s{sT1}, s{sWAVE}, 7")
e(f"    s_add_u32 s{sT0}, s{sT0}, s{sT1}")
e(f"    s_lshl_b32 s{sT1}, s{sPID}, 4")
e(f"    s_add_u32 s{sT1}, s{sT1}, {WS_ML}")
e(f"    v_add_u32 v{vY}, s{sT0}, v{vKV}")
e(f"    v_mov_b32 v{vA[0]}, -1")
e(f"    v_mov_b32 v{vA[0]+1}, -1")
e(f"    v_writelane_b32 v{vY}, s{sT1}, 8")
e(f"    v_mov_b32 v{vA[0]+2}, -1")
e(f"    v_mov_b32 v{vA[0]+3}, -1")
e(f"    s_movk_i32 s{sT2}, 0xff")
e(f"    s_cmp_eq_u32 s{sWAVE}, 0")
e(f"    s_cselect_b32 exec_lo, 0x1ff, s{sT2}")
e(f"    s_mov_b32 exec_hi, 0")
e(f"    buffer_store_dwordx4 {r4(vA[0])}, v{vY}, {s4(SW)}, 0 offen sc1")
e(f"    s_mov_b64 exec, -1")
e("    s_barrier")
for j in range(16):
    e(f"    buffer_load_dwordx4 {r4(vK+4*j)}, v{vKV}, {s4(SK)}, s{4+j} offen{NT}")
e(f"    v_and_b32 v{vT2}, 1, v0")
e(f"    v_lshlrev_b32 v{vT2}, 4, v{vT2}")
e(f"    s_mov_b32 s{sT0}, 0xffff")
e(f"    v_lshlrev_b32 v{vT2}, v{vT2}, s{sT0}")
e(f"    v_bfe_u32 v{vT}, v0, 1, 2")
for r in range(4):
    e(f"    v_cmp_eq_u32 vcc, {r}, v{vT}")
    e("    s_nop 1")
    e(f"    v_cndmask_b32 v{vM+r}, 0, v{vT2}, vcc")
e(f"    s_mov_b32 s{sSELLO}, 0x01000100")
e(f"    s_mov_b32 s{sSELHI}, 0x03020302")
e(f"    s_mov_b32 s{sM1}, 0xcccccccc")
e(f"    s_mov_b32 s{sM1+1}, 0xcccccccc")
e(f"    s_mov_b32 s{sM0}, 0xaaaaaaaa")
e(f"    s_mov_b32 s{sM0+1}, 0xaaaaaaaa")
e(f"    s_lshl_b32 s{sWO0}, s{sHEAD}, 17")
e(f"    s_lshr_b32 s{sT0}, s{sWAVE}, 2")
e(f"    s_lshl_b32 s{sT0}, s{sT0}, 15")
e(f"    s_add_u32 s{sWO0}, s{sWO0}, s{sT0}")
e(f"    s_and_b32 s{sT0}, s{sWAVE}, 3")
e(f"    s_lshl_b32 s{sT0}, s{sT0}, 8")
e(f"    s_add_u32 s{sWO0}, s{sWO0}, s{sT0}")
e(f"    s_add_u32 s{sWO1}, s{sWO0}, 4096")
if WOX:
    e(f"    s_mov_b32 s{sWO1}, 0x800000")
stamp(1)

def vload(j, reg):
    e(f"    buffer_load_dwordx4 {r4(reg)}, v{vKV}, {s4(SV)}, s{4+j} offen{NT}")
def woload(j, reg):
    e(f"    buffer_load_dwordx4 {r4(reg)}, v{vWO}, {s4(SO)}, s{sWO0+(j//4 if not WOX else int(j >= 2))} offen offset:{1024*(j%4)}{NTW}")

for j in range(8):
    A = vA[j % 2]
    e("    s_waitcnt vmcnt(24)")
    e(f"    v_perm_b32 v{vT}, v{vX+j//2}, v{vX+j//2}, s{sSELHI if j%2 else sSELLO}")
    for r in range(4):
        e(f"    v_and_b32 v{A+r}, v{vT}, v{vM+r}")
    e("    s_nop 1")
    c = "0" if j == 0 else r4(vD)
    e(f"    v_mfma_f32_16x16x32_bf16 {r4(vD)}, {r4(A)}, {r4(vW+4*j)}, {c}")
    vload(j, vW+4*j)
e(f"    s_lshl_b32 s{sT0}, s{sWAVE}, 9")
e(f"    v_add_u32 v{vT}, s{sT0}, v{vKV}")
e(f"    v_lshrrev_b32 v{vT2}, 4, v0")
e(f"    v_and_b32 v{vY}, 15, v0")
e(f"    v_lshlrev_b32 v{vY}, 4, v{vY}              ; i*16")
e(f"    v_lshl_add_u32 v{vY+1}, v{vT2}, 11, v{vY}    ; g*2048 + i*16")
e(f"    s_lshl_b32 s{sT0}, s{sWAVE}, 8")
e(f"    s_add_u32 s{sT0}, s{sT0}, {L_QB}")
e(f"    v_add_u32 v{vY}, s{sT0}, v{vY}")
e(f"    v_lshl_add_u32 v{vY+2}, v{vT2}, 2, v{vY}")
e("    s_mov_b32 exec_hi, 0")
e(f"    ds_write_b128 v{vT}, {r4(vD)} offset:{L_QP}")
e("    s_mov_b32 exec_hi, -1")
e("    s_waitcnt lgkmcnt(0)")
e("    s_barrier")
a, b = vA[0], vA[1]
e(f"    ds_read_b128 {r4(a)}, v{vY+1} offset:{L_QP}")
e(f"    ds_read_b128 {r4(b)}, v{vY+1} offset:{L_QP+256}")
e(f"    ds_read_b128 {r4(vD)}, v{vY+1} offset:{L_QP+512}")
e(f"    ds_read_b128 {r4(vX)}, v{vY+1} offset:{L_QP+512+256}")
for k in (1, 2, 3):
    e("    s_waitcnt lgkmcnt(1)")
    for r in range(4):
        e(f"    v_add_f32 v{a+r}, v{a+r}, v{vD+r}")
    if k < 3:
        e(f"    ds_read_b128 {r4(vD)}, v{vY+1} offset:{L_QP+512*(k+1)}")
        e("    s_waitcnt lgkmcnt(1)")
    else:
        e("    s_waitcnt lgkmcnt(0)")
    for r in range(4):
        e(f"    v_add_f32 v{b+r}, v{b+r}, v{vX+r}")
    if k < 3:
        e(f"    ds_read_b128 {r4(vX)}, v{vY+1} offset:{L_QP+512*(k+1)+256}")
e("    s_nop 1")
for r in range(4):
    e(f"    v_permlane32_swap_b32 v{a+r}, v{b+r}")
for r in range(4):
    e(f"    v_add_f32 v{a+r}, v{a+r}, v{b+r}")
e("    s_nop 1")
e(f"    v_permlane16_swap_b32 v{a}, v{a+2}")
e(f"    v_permlane16_swap_b32 v{a+1}, v{a+3}")
e(f"    v_add_f32 v{a}, v{a}, v{a+2}")
e(f"    v_add_f32 v{a+1}, v{a+1}, v{a+3}")
e(f"    v_cvt_pk_bf16_f32 v{a}, v{a}, v{a+1}")
e(f"    ds_write_b32 v{vY+2}, v{a}")
e(f"    ds_read_b128 {r4(vX)}, v{vY}")
e("    s_waitcnt lgkmcnt(0)")
stamp(2)

S = [14, 15]; T = [16, 17]; U = [18, 19]; Wd = [20, 21]
DPP = "row_mask:0xf bank_mask:"
for j in range(16):
    s = S[j % 2]
    e("    s_waitcnt vmcnt(23)")
    kb = vK + 4*j
    e(f"    v_dot2_f32_bf16 v{s}, v{kb}, v{vX}, 0")
    for r in range(1, 4):
        e(f"    v_dot2_f32_bf16 v{s}, v{kb+r}, v{vX+r}, v{s}")
    if j < 8:
        vload(8 + j, kb)
    else:
        woload(j - 8, kb)
    if j % 2 == 1:
        t = T[(j//2) % 2]
        e("    s_nop 1")
        e(f"    v_add_f32_dpp v{t}, v{S[0]}, v{S[0]} row_ror:8 {DPP}0x3")
        e(f"    v_add_f32_dpp v{t}, v{S[1]}, v{S[1]} row_ror:8 {DPP}0xc")
    if j % 4 == 3:
        u = U[(j//4) % 2]
        e(f"    v_add_f32_dpp v{u}, v{T[0]}, v{T[0]} row_half_mirror {DPP}0x5")
        e("    s_nop 0")
        e(f"    v_add_f32_dpp v{u}, v{T[1]}, v{T[1]} row_half_mirror {DPP}0xa")
    if j % 8 == 7:
        w = Wd[j//8]
        e(f"    v_add_f32_dpp v{vT}, v{U[0]}, v{U[0]} quad_perm:[2,3,0,1] {DPP}0xf")
        e("    s_nop 0")
        e(f"    v_add_f32_dpp v{vT2}, v{U[1]}, v{U[1]} quad_perm:[2,3,0,1] {DPP}0xf")
        e(f"    v_cndmask_b32 v{w}, v{vT}, v{vT2}, s[{sM1}:{sM1+1}]")
e(f"    v_add_f32_dpp v{vT}, v{Wd[0]}, v{Wd[0]} quad_perm:[1,0,3,2] {DPP}0xf")
e("    s_nop 0")
e(f"    v_add_f32_dpp v{vT2}, v{Wd[1]}, v{Wd[1]} quad_perm:[1,0,3,2] {DPP}0xf")
e(f"    v_cndmask_b32 v{vS}, v{vT}, v{vT2}, s[{sM0}:{sM0+1}]")
e(f"    v_cvt_pk_bf16_f32 v{vS}, v{vS}, v{vS}")
e(f"    v_and_b32 v{vS}, 0xffff0000, v{vS}")
e(f"    v_mul_f32 v{vS}, 0x3db504f3, v{vS}")
e(f"    v_cvt_pk_bf16_f32 v{vS}, v{vS}, v{vS}")
e(f"    v_and_b32 v{vS}, 0xffff0000, v{vS}")

def row_reduce(op, dst, src):
    e("    s_nop 1")
    e(f"    {op}_dpp v{dst}, v{src}, v{src} row_ror:8 {DPP}0xf")
    for n in (4, 2, 1):
        e("    s_nop 1")
        e(f"    {op}_dpp v{dst}, v{dst}, v{dst} row_ror:{n} {DPP}0xf")
def xrow_reduce(op, dst, tmp):
    for sw in ("16", "32"):
        e(f"    v_mov_b32 v{tmp}, v{dst}")
        e("    s_nop 1")
        e(f"    v_permlane{sw}_swap_b32 v{dst}, v{tmp}")
        e(f"    {op} v{dst}, v{dst}, v{tmp}")
row_reduce("v_max_f32", vT, vS)
xrow_reduce("v_max_f32", vT, vT2)
e(f"    s_lshl_b32 s{sT0}, s{sWAVE}, 2")
e(f"    v_mov_b32 v{vY}, s{sT0}")
e(f"    v_and_b32 v{vY+1}, 15, v0")
e(f"    v_lshlrev_b32 v{vY+1}, 2, v{vY+1}          ; i*4")
e(f"    ds_write_b32 v{vY}, v{vT} offset:{L_M}")
e("    s_waitcnt lgkmcnt(0)")
e("    s_barrier")
e(f"    ds_read_b32 v{vT}, v{vY+1} offset:{L_M}")
e(f"    s_cmp_lg_u32 s{sWAVE}, 0")
e("    s_cbranch_scc1 L_noadd")
e(f"    s_lshl_b32 s{sT0}, s{sPROB}, 7")
e(f"    v_mov_b32 v{vY+2}, s{sT0}")
e(f"    v_mov_b32 v{vT2}, 1")
e("    s_mov_b64 exec, 1")
e(f"    buffer_atomic_add v{vT2}, v{vY+2}, {s4(SD)}, 0 offen sc1")
e("    s_mov_b64 exec, -1")
e("L_noadd:")
e("    s_waitcnt lgkmcnt(0)")
vMX = vY + 3
row_reduce("v_max_f32", vMX, vT)
e(f"    v_sub_f32 v{vS}, v{vS}, v{vMX}")
e(f"    v_mul_f32 v{vS}, 0x3fb8aa3b, v{vS}")
e(f"    v_exp_f32 v{vS}, v{vS}")
e("    s_nop 0")
e(f"    v_cvt_pk_bf16_f32 v{vP}, v{vS}, v{vS}")
row_reduce("v_add_f32", vT, vS)
xrow_reduce("v_add_f32", vT, vT2)
e(f"    ds_write_b32 v{vY}, v{vT} offset:{L_L}")
stamp(3)

def bc_mfma(src, lane, data, j, first):
    A = vA[j % 2]
    for r in range(4):
        e(f"    v_and_b32_dpp v{A+r}, v{src}, v{vM+r} row_newbcast:{lane} {DPP}0xf")
def vreg(j): return vW + 4*j if j < 8 else vK + 4*(j-8)
bc_mfma(vP, brev(0), None, 0, True)
for j in range(16):
    if j < 15:
        bc_mfma(vP, brev(j+1), None, j+1, False)
    e(f"    s_waitcnt vmcnt({23-j})")
    if j == 15:
        e("    s_nop 0")
    c = "0" if j == 0 else r4(vD)
    e(f"    v_mfma_f32_16x16x32_bf16 {r4(vD)}, {r4(vA[j%2])}, {r4(vreg(j))}, {c}")
e(f"    s_and_b32 s{sT0}, s{sHEAD}, 1")
e(f"    s_or_b32 s{sCONS}, s{sT0}, s{sSPL}          ; 0 -> consumer")
e(f"    s_or_b32 s{sT0}, s{sCONS}, s{sWAVE}")
e(f"    s_cmp_lg_u32 s{sT0}, 0")
e("    s_cbranch_scc1 L_nocnt")
e(f"    buffer_load_dword v{vS}, v{vY+2}, {s4(SD)}, 0 offen sc1")
e("L_nocnt:")
e(f"    s_mul_i32 s{sT0}, s{sWAVE}, 576")
e(f"    v_lshrrev_b32 v{vT}, 4, v0               ; g")
e(f"    v_lshlrev_b32 v{vT2}, 5, v{vT}")
e(f"    v_add3_u32 v{vT2}, v{vT2}, v{vKV}, s{sT0}")
e(f"    s_lshr_b32 s{sT0}, s{sWAVE}, 2")
e(f"    s_lshl_b32 s{sT0}, s{sT0}, 6")
e(f"    v_lshl_add_u32 v{vT}, v{vT}, 4, s{sT0}")
e(f"    v_and_b32 v{vX}, 3, v0")
e(f"    v_lshl_add_u32 v{vT}, v{vX}, 2, v{vT}")
e(f"    v_bfe_u32 v{vX}, v0, 2, 1")
e(f"    v_mul_u32_u24 v{vX}, 288, v{vX}")
e(f"    v_bfe_u32 v{vX+1}, v0, 3, 1")
e(f"    v_mul_u32_u24 v{vX+1}, 576, v{vX+1}")
e(f"    v_add3_u32 v{vT}, v{vT}, v{vX}, v{vX+1}")
e("    s_mov_b32 exec_hi, 0")
e(f"    ds_write_b128 v{vT2}, {r4(vD)} offset:{L_OP}")
e("    s_mov_b32 exec_hi, -1")
e("    s_waitcnt lgkmcnt(0)")
e("    s_barrier")
stamp(4)
for k in range(8):
    e(f"    ds_read_b32 v{vW+k}, v{vT} offset:{L_OP+1152*k}")
e(f"    ds_read_b32 v{vW+8}, v{vY+1} offset:{L_L}")
e("    s_waitcnt lgkmcnt(5)")
e(f"    v_add_f32 v{vW}, v{vW}, v{vW+1}")
e(f"    v_add_f32 v{vW+2}, v{vW+2}, v{vW+3}")
e("    s_waitcnt lgkmcnt(1)")
e(f"    v_add_f32 v{vW+4}, v{vW+4}, v{vW+5}")
e(f"    v_add_f32 v{vW+6}, v{vW+6}, v{vW+7}")
e(f"    v_add_f32 v{vW}, v{vW}, v{vW+2}")
e(f"    v_add_f32 v{vW+4}, v{vW+4}, v{vW+6}")
e(f"    v_add_f32 v{vW}, v{vW}, v{vW+4}")
e("    s_nop 1")
e(f"    v_add_f32_dpp v{vW}, v{vW}, v{vW} row_ror:8 {DPP}0xf")
e(f"    v_cvt_pk_bf16_f32 v{vP}, v{vW}, v{vW}")
e(f"    s_cmp_lg_u32 s{sWAVE}, 15")
e("    s_cbranch_scc1 L_noml")
e("    s_waitcnt lgkmcnt(0)")
row_reduce("v_add_f32", vW+9, vW+8)
e(f"    v_min_u32 v{vW+10}, -2, v{vMX}")
e(f"    v_min_u32 v{vW+11}, -2, v{vW+9}")
e(f"    s_lshl_b32 s{sT1}, s{sPID}, 4")
e(f"    s_add_u32 s{sT1}, s{sT1}, {WS_ML}")
e(f"    v_mov_b32 v{vW+9}, s{sT1}")
e("    s_mov_b64 exec, 1")
e(f"    buffer_store_dwordx2 v[{vW+10}:{vW+11}], v{vW+9}, {s4(SW)}, 0 offen sc1")
e("    s_mov_b64 exec, -1")
e("L_noml:")
e("    s_nop 0")
bc_mfma(vP, 0, None, 0, True)
for j in range(8):
    if j < 7:
        bc_mfma(vP, j+1, None, j+1, False)
    e(f"    s_waitcnt vmcnt({7-j})")
    if j == 7:
        e("    s_nop 0")
    c = "0" if j == 0 else r4(vD)
    e(f"    v_mfma_f32_16x16x32_bf16 {r4(vD)}, {r4(vA[j%2])}, {r4(vK+32+4*j)}, {c}")
e(f"    s_lshl_b32 s{sT0}, s{sWAVE}, 9")
e(f"    v_and_b32 v{vT}, 15, v0")
e(f"    v_lshlrev_b32 v{vT}, 5, v{vT}")
e(f"    v_and_b32 v{vT2}, 16, v0")
e(f"    v_add3_u32 v{vT}, v{vT}, v{vT2}, s{sT0}")
e(f"    s_or_b32 s{sT0}, s{sCONS}, s{sWAVE}")
e(f"    s_cmp_lg_u32 s{sT0}, 0")
e("    s_cbranch_scc1 L_cntok")
e("L_cnt:")
e(f"    v_readfirstlane_b32 s{sT0}, v{vS}")
e(f"    s_cmp_ge_u32 s{sT0}, 128")
e("    s_cbranch_scc1 L_cntok")
e(f"    buffer_load_dword v{vS}, v{vY+2}, {s4(SD)}, 0 offen sc1")
e("    s_waitcnt vmcnt(0)")
e("    s_branch L_cnt")
e("L_cntok:")
e("    s_nop 1")
e("    s_mov_b32 exec_hi, 0")
e(f"    ds_write_b128 v{vT}, {r4(vD)} offset:{L_YP}")
e("    s_mov_b32 exec_hi, -1")
e("    s_waitcnt lgkmcnt(0)")
e("    s_barrier")
e(f"    s_cmp_gt_u32 s{sWAVE}, 1")
e("    s_cbranch_scc1 L_published")
e(f"    s_lshl_b32 s{sT0}, s{sWAVE}, 10")
e(f"    v_add_u32 v{vT}, s{sT0}, v{vKV}")
for k in range(4):
    e(f"    ds_read_b128 {r4(vW+4*k)}, v{vT} offset:{L_YP+2048*k}")
e(f"    s_lshl_b32 s{sT0}, s{sPID}, 11")
e("    s_waitcnt lgkmcnt(2)")
for r in range(4):
    e(f"    v_add_f32 v{vW+r}, v{vW+r}, v{vW+4+r}")
e("    s_waitcnt lgkmcnt(0)")
for r in range(4):
    e(f"    v_add_f32 v{vW+8+r}, v{vW+8+r}, v{vW+12+r}")
for r in range(4):
    e(f"    v_add_f32 v{vW+r}, v{vW+r}, v{vW+8+r}")
for r in range(4):
    e(f"    v_min_u32 v{vW+r}, -2, v{vW+r}")
e(f"    buffer_store_dwordx4 {r4(vW)}, v{vT}, {s4(SW)}, s{sT0} offen sc1")
e("L_published:")
stamp(5)
if DIAG:
    e(f"    s_cmp_lg_u32 s{sWAVE}, 0")
    e("    s_cbranch_scc1 L_nodiag")
    e("    s_waitcnt lgkmcnt(0)")
    for i in range(6):
        e(f"    v_writelane_b32 v{vK}, s{sTS+2*i}, {i}")
    e(f"    s_getreg_b32 s{sT0}, hwreg(HW_REG_XCC_ID)")
    e(f"    v_writelane_b32 v{vK}, s{sT0}, 7")
    e(f"    s_lshl_b32 s{sT0}, s2, 6")
    e(f"    s_add_u32 s{sT0}, s{sT0}, {WS_DIAG}")
    e(f"    v_lshlrev_b32 v{vK+1}, 2, v0")
    e("    s_mov_b64 exec, 0xbf")
    e(f"    buffer_store_dword v{vK}, v{vK+1}, {s4(SW)}, s{sT0} offen")
    if DIAG == 2:
        e("    s_mov_b64 exec, 0x3f")
        e(f"    buffer_atomic_umax v{vK}, v{vK+1}, {s4(SD)}, 0 offen offset:8 sc1")
        e(f"    v_not_b32 v{vK+2}, v{vK}")
        e(f"    buffer_atomic_umax v{vK+2}, v{vK+1}, {s4(SD)}, 0 offen offset:36 sc1")
    e("    s_mov_b64 exec, -1")
    e("L_nodiag:")
e(f"    s_cmp_lg_u32 s{sCONS}, 0")
e("    s_cbranch_scc1 L_end")
e(f"    s_lshl_b32 s{sT0}, s{sPROB}, 4")
e(f"    s_add_u32 s{sT0}, s{sT0}, s{sWAVE}")
e(f"    s_lshl_b32 s{sT0}, s{sT0}, 3")
e(f"    v_lshrrev_b32 v{vT}, 3, v0")
e(f"    v_add_u32 v{vT}, s{sT0}, v{vT}              ; p")
e(f"    v_lshlrev_b32 v{vT2}, 4, v{vT}")
e(f"    v_and_b32 v{vX}, 7, v0")
e(f"    v_lshlrev_b32 v{vX}, 4, v{vX}")
e(f"    v_lshl_add_u32 v{vT}, v{vT}, 11, v{vX}       ; y offset")
e(f"    s_lshl_b32 s{sT0}, s{sHEAD}, 6             ; cons*128")
e(f"    s_mov_b32 s{sT1}, {WS_ML}")
Y = vK + 8; ML = vK + 12
e("L_poll:")
e(f"    buffer_load_dwordx4 {r4(Y)}, v{vT}, {s4(SW)}, s{sT0} offen sc1")
e(f"    buffer_load_dwordx2 v[{ML}:{ML+1}], v{vT2}, {s4(SW)}, s{sT1} offen sc1")
e("    s_waitcnt vmcnt(0)")
e(f"    v_max3_u32 v{vX}, v{Y}, v{Y+1}, v{Y+2}")
e(f"    v_max3_u32 v{vX+1}, v{Y+3}, v{ML}, v{ML+1}")
e(f"    v_max_u32 v{vX}, v{vX}, v{vX+1}")
e(f"    v_cmp_eq_u32 vcc, -1, v{vX}")
e("    s_cbranch_vccnz L_poll")
e(f"    v_max_f32_dpp v{vX}, v{ML}, v{ML} row_ror:8 {DPP}0xf")
e(f"    v_mov_b32 v{vX+1}, v{vX}")
e("    s_nop 1")
e(f"    v_permlane16_swap_b32 v{vX}, v{vX+1}")
e(f"    v_max_f32 v{vX}, v{vX}, v{vX+1}")
e(f"    v_sub_f32 v{vX}, v{ML}, v{vX}")
e(f"    v_mul_f32 v{vX}, 0x3fb8aa3b, v{vX}")
e(f"    v_exp_f32 v{vX}, v{vX}")
e("    s_nop 0")
e(f"    v_mul_f32 v{vX+1}, v{vX}, v{ML+1}")
e("    s_nop 1")
e(f"    v_add_f32_dpp v{vX+1}, v{vX+1}, v{vX+1} row_ror:8 {DPP}0xf")
e(f"    v_mov_b32 v{vX+2}, v{vX+1}")
e("    s_nop 1")
e(f"    v_permlane16_swap_b32 v{vX+1}, v{vX+2}")
e(f"    v_add_f32 v{vX+1}, v{vX+1}, v{vX+2}")
e(f"    v_rcp_f32 v{vX+1}, v{vX+1}")
e("    s_nop 0")
e(f"    v_mul_f32 v{vX}, v{vX}, v{vX+1}")
for r in range(4):
    e(f"    v_mul_f32 v{Y+r}, v{Y+r}, v{vX}")
for r in range(4):
    e(f"    v_add_f32_dpp v{Y+r}, v{Y+r}, v{Y+r} row_ror:8 {DPP}0xf")
e(f"    v_permlane16_swap_b32 v{Y}, v{Y+1}")
e("    s_nop 0")
e(f"    v_permlane16_swap_b32 v{Y+2}, v{Y+3}")
e(f"    v_add_f32 v{Y}, v{Y}, v{Y+1}")
e(f"    v_add_f32 v{Y+2}, v{Y+2}, v{Y+3}")
e(f"    s_lshl_b32 s{sT0}, s{sWAVE}, 7")
e(f"    v_and_b32 v{vT}, 7, v0")
e(f"    v_lshrrev_b32 v{vT2}, 4, v0")
e(f"    v_permlane32_swap_b32 v{Y}, v{Y+2}")
e(f"    v_lshl_add_u32 v{vT}, v{vT}, 2, v{vT2}")
e(f"    v_lshl_add_u32 v{vT}, v{vT}, 2, s{sT0}")
e(f"    v_add_f32 v{Y}, v{Y}, v{Y+2}")
e(f"    ds_write_b32 v{vT}, v{Y} offset:{L_RED}")
e("    s_waitcnt lgkmcnt(0)")
e("    s_barrier")
e(f"    s_cmp_lg_u32 s{sWAVE}, 0")
e("    s_cbranch_scc1 L_end")
e(f"    v_and_b32 v{vT}, 31, v0")
e(f"    v_lshrrev_b32 v{vT2}, 5, v0")
e(f"    v_lshlrev_b32 v{vT2}, 10, v{vT2}")
e(f"    v_lshl_add_u32 v{vT2}, v{vT}, 2, v{vT2}")
for k in range(8):
    e(f"    ds_read_b32 v{vW+k}, v{vT2} offset:{L_RED+128*k}")
e(f"    s_lshl_b32 s{sT0}, s{sPROB}, 10")
e(f"    s_lshl_b32 s{sT1}, s{sHEAD}, 5             ; cons*64")
e(f"    s_add_u32 s{sT0}, s{sT0}, s{sT1}")
e(f"    v_lshlrev_b32 v{vT}, 1, v{vT}")
e("    s_waitcnt lgkmcnt(4)")
e(f"    v_add_f32 v{vW}, v{vW}, v{vW+1}")
e(f"    v_add_f32 v{vW+2}, v{vW+2}, v{vW+3}")
e("    s_waitcnt lgkmcnt(0)")
e(f"    v_add_f32 v{vW+4}, v{vW+4}, v{vW+5}")
e(f"    v_add_f32 v{vW+6}, v{vW+6}, v{vW+7}")
e(f"    v_add_f32 v{vW}, v{vW}, v{vW+2}")
e(f"    v_add_f32 v{vW+4}, v{vW+4}, v{vW+6}")
e(f"    v_add_f32 v{vW}, v{vW}, v{vW+4}")
e(f"    v_mov_b32 v{vW+1}, v{vW}")
e("    s_nop 1")
e(f"    v_permlane32_swap_b32 v{vW}, v{vW+1}")
e(f"    v_add_f32 v{vW}, v{vW}, v{vW+1}")
e(f"    v_cvt_pk_bf16_f32 v{vW}, v{vW}, v{vW}")
e("    s_mov_b32 exec_hi, 0")
e(f"    buffer_store_short v{vW}, v{vT}, {s4(SOUT)}, s{sT0} offen")
if DIAG:
    e(f"    s_memrealtime s[{sTS}:{sTS+1}]")
    e("    s_waitcnt lgkmcnt(0)")
    e(f"    v_mov_b32 v{vK}, s{sTS}")
    e(f"    s_lshl_b32 s{sT0}, s2, 6")
    e(f"    s_add_u32 s{sT0}, s{sT0}, {WS_DIAG+24}")
    e(f"    v_mov_b32 v{vK+1}, 0")
    e("    s_mov_b64 exec, 1")
    e(f"    buffer_store_dword v{vK}, v{vK+1}, {s4(SW)}, s{sT0} offen")
    if DIAG == 2:
        e(f"    buffer_atomic_umax v{vK}, v{vK+1}, {s4(SD)}, 0 offen offset:32 sc1")
e("L_end:")
e("    s_endpgm")
e('.section .rodata,"a"')
e(".p2align 6")
e(f".amdhsa_kernel {NAME}_kernel")
e("  .amdhsa_next_free_vgpr 128")
e("  .amdhsa_next_free_sgpr 102")
e("  .amdhsa_accum_offset 128")
e("  .amdhsa_group_segment_fixed_size 0")
e("  .amdhsa_kernarg_size 104")
e("  .amdhsa_user_sgpr_count 2")
e("  .amdhsa_user_sgpr_kernarg_segment_ptr 1")
e("  .amdhsa_system_sgpr_workgroup_id_x 1")
e(".end_amdhsa_kernel")
open(sys.argv[1], "w").write("\n".join(L) + "\n")
```

```python
import sys
NAME = "concat_heads__gqa_block_cached__gqa_block_cached__decode"
opts = dict(a.split("=") for a in sys.argv[2:])
DIAG = int(opts.get("diag", 0))
NT = opts.get("nt", "nt")
NTW = opts.get("ntw", "")
NT = "" if NT == "none" else " " + NT.replace("+", " ")
NTW = "" if NTW in ("none", "") else " " + NTW.replace("+", " ")
PAT = int(opts.get("p", 0)); ROT = int(opts.get("r", 0)); WQX = int(opts.get("wqx", 0)); WOX = int(opts.get("wox", 0))
PD = int(opts.get("pd", 0)); NOB = int(opts.get("nob", 0))
L = []
def pace():
    if PD: L.append(f"    s_waitcnt vmcnt({PD-1})")
def e(s=""):
    L.append(s)
def brev(j):
    return int(f"{j:04b}"[::-1], 2)

hdr = open("cdna_kernels/%s.s.ref" % NAME).read().split("\n")
for ln in hdr:
    if ln.startswith("; @launch"):
        e("; @launch grid=(256,1,1) block=(1024,1,1) lds=32768")
        break
    e(ln)
e('.amdgcn_target "amdgcn-amd-amdhsa--gfx950"')
e(".text")
e(f".globl {NAME}_kernel")
e(".p2align 8")
e(f".type {NAME}_kernel,@function")
e(f"{NAME}_kernel:")

SX, SK, SV, SQ, SO, SW, SD = 32, 36, 40, 44, 48, 52, 56
SOUT = 84
sHEAD, sSPL, sPROB, sWAVE, sPID = 60, 61, 62, 63, 64
sT0, sT1, sT2 = 65, 66, 67
sKV = 68
sWQ = 72
sWO0, sWO1 = 73, 74
sSELLO, sSELHI = 75, 76
sM1, sM0 = 78, 80
sCONS = 82
sTS = 90
vL, vKV, vWQ, vWO, vT, vT2 = 0, 1, 2, 3, 4, 5
vM = 6
vX = 10
vA = [14, 18]
vD = 22
vP = 26
vS = 27
vY = 28
vW = 32
vK = 64
L_QP = 0
L_QB = 8192
L_M = 12288
L_L = 12352
L_OP = 12544
L_YP = 21760
L_RED = 29952
WS_ML = 512 * 1024
WS_DIAG = 1024 * 1024

def stamp(i):
    if DIAG:
        e(f"    s_memrealtime s[{sTS+2*i}:{sTS+2*i+1}]")

def r4(b): return f"v[{b}:{b+3}]"
def s4(b): return f"s[{b}:{b+3}]"

stamp(0)
e("    s_cmp_ge_u32 s2, 256")
e("    s_cbranch_scc1 L_end")
e("    s_load_dwordx16 s[4:19], s[0:1], 0")
e("    s_load_dwordx8 s[20:27], s[0:1], 64")
e("    s_load_dwordx2 s[28:29], s[0:1], 96")
e("    v_lshrrev_b32 v4, 6, v0")
e("    v_and_b32 v0, 63, v0                  ; lane")
e(f"    v_readfirstlane_b32 s{sWAVE}, v4")
e(f"    s_lshr_b32 s{sT0}, s2, 5")
e(f"    s_and_b32 s{sT1}, s2, 7")
e(f"    s_lshr_b32 s{sPROB}, s2, 7")
e(f"    s_and_b32 s{sT0}, s{sT0}, 3")
e(f"    s_lshl_b32 s{sT0}, s{sT0}, 3")
e(f"    s_or_b32 s{sHEAD}, s{sT0}, s{sT1}          ; head 0..31")
e(f"    s_bfe_u32 s{sSPL}, s2, 0x20003            ; split 0..3")
e(f"    v_lshlrev_b32 v{vKV}, 4, v0              ; lane*16")
e(f"    v_lshrrev_b32 v{vT}, 4, v0               ; g")
e(f"    v_and_b32 v{vT2}, 15, v0                 ; i")
e(f"    v_lshlrev_b32 v{vT2}, 4, v{vT2}")
e(f"    v_lshl_add_u32 v{vWQ}, v{vT}, 16, v{vT2}     ; g*8*8192 + i*16")
e(f"    v_lshl_add_u32 v{vWO}, v{vT}, 13, v{vT2}     ; g*8*1024 + i*16")
e(f"    v_lshlrev_b32 v{vY}, 4, v{vT}              ; g*16 (x offset)")
e(f"    s_lshl_b32 s{sT0}, s{sWAVE}, 6             ; x soffset")
e(f"    s_lshl_b32 s{sWQ}, s{sWAVE}, 18")
e(f"    s_lshl_b32 s{sT1}, s{sHEAD}, 8")
e(f"    s_add_u32 s{sWQ}, s{sWQ}, s{sT1}")
e(f"    s_mov_b32 s{SX+2}, 1024")
e(f"    s_mov_b32 s{SX+3}, 0x20000")
e(f"    s_mov_b32 s{SQ+2}, 0x400000")
e(f"    s_mov_b32 s{SQ+3}, 0x20000")
e(f"    s_cmp_eq_u32 s{sPROB}, 0")
e("    s_waitcnt lgkmcnt(0)")
e(f"    s_cselect_b64 s[{SX}:{SX+1}], s[4:5], s[14:15]")
e(f"    s_cselect_b64 s[{SQ}:{SQ+1}], s[10:11], s[20:21]")
e(f"    s_cselect_b64 s[{SK}:{SK+1}], s[6:7], s[16:17]")
e(f"    s_cselect_b64 s[{SV}:{SV+1}], s[8:9], s[18:19]")
e(f"    s_cselect_b64 s[{SO}:{SO+1}], s[12:13], s[22:23]")
e(f"    buffer_load_dwordx4 {r4(vX)}, v{vY}, {s4(SX)}, s{sT0} offen")
for j in range(8):
    if j >= PD: pace()
    e(f"    buffer_load_dwordx4 {r4(vW+4*j)}, v{vWQ}, {s4(SQ)}, s{sWQ} offen{NTW}")
    if j < 7:
        e(f"    s_add_u32 s{sWQ}, s{sWQ}, {8192 if not (WQX and j == 1) else 0x800000}")
e(f"    s_mov_b32 s{SK+2}, 0x2000000")
e(f"    s_mov_b32 s{SK+3}, 0x20000")
e(f"    s_mov_b32 s{SV+2}, 0x2000000")
e(f"    s_mov_b32 s{SV+3}, 0x20000")
e(f"    s_mov_b32 s{SO+2}, 0x400000")
e(f"    s_mov_b32 s{SO+3}, 0x20000")
e(f"    s_mov_b64 s[{SW}:{SW+1}], s[28:29]")
e(f"    s_mov_b32 s{SW+2}, 0x200000")
e(f"    s_mov_b32 s{SW+3}, 0x20000")
e(f"    s_mov_b64 s[{SD}:{SD+1}], s[26:27]")
e(f"    s_mov_b32 s{SD+2}, 256")
e(f"    s_mov_b32 s{SD+3}, 0x20000")
e(f"    s_mov_b64 s[{SOUT}:{SOUT+1}], s[24:25]")
e(f"    s_mov_b32 s{SOUT+2}, 2048")
e(f"    s_mov_b32 s{SOUT+3}, 0x20000")
shs, shw, shj = [(18, 14, 10), (18, 10, 14), (14, 10, 16)][PAT]
e(f"    s_lshl_b32 s{sKV}, s{sHEAD}, 20")
e(f"    s_lshl_b32 s{sT1}, s{sSPL}, {shs}")
e(f"    s_add_u32 s{sKV}, s{sKV}, s{sT1}")
WR = int(opts.get("wr", 0))
if WR == 0:
    e(f"    s_mov_b32 s{sT1}, s{sWAVE}")
elif WR == 1:
    e(f"    s_lshr_b32 s{sT1}, s2, 4")
    e(f"    s_add_u32 s{sT1}, s{sT1}, s2")
    e(f"    s_add_u32 s{sT1}, s{sT1}, s{sWAVE}")
elif WR == 2:
    e(f"    s_lshr_b32 s{sT1}, s2, 3")
    e(f"    s_add_u32 s{sT1}, s{sT1}, s{sWAVE}")
elif WR == 3:
    e(f"    s_lshl_b32 s{sT1}, s2, 1")
    e(f"    s_add_u32 s{sT1}, s{sT1}, s{sWAVE}")
e(f"    s_and_b32 s{sT1}, s{sT1}, 15")
e(f"    s_lshl_b32 s{sT1}, s{sT1}, {shw}")
e(f"    s_add_u32 s{sKV}, s{sKV}, s{sT1}")
if ROT == 0:
    e(f"    s_mov_b32 s{sT1}, 0")
elif ROT == 1:
    e(f"    s_lshl_b32 s{sT1}, s{sPROB}, 3")
    e(f"    s_add_u32 s{sT1}, s{sT1}, s{sHEAD}")
elif ROT == 2:
    e(f"    s_lshr_b32 s{sT1}, s2, 3")
    e(f"    s_add_u32 s{sT1}, s{sT1}, s2")
    e(f"    s_add_u32 s{sT1}, s{sT1}, s{sWAVE}")
    e(f"    s_mul_i32 s{sT1}, s{sT1}, 5")
elif ROT == 3:
    e(f"    s_lshl_b32 s{sT1}, s{sPROB}, 3")
    e(f"    s_add_u32 s{sT1}, s{sT1}, s{sHEAD}")
    e(f"    s_add_u32 s{sT1}, s{sT1}, s{sWAVE}")
e(f"    s_and_b32 s{sT1}, s{sT1}, 15")
e(f"    s_lshl_b32 s{sT1}, s{sT1}, {shj}")
for i in range(16):
    e(f"    s_add_u32 s{4+i}, s{sKV}, s{sT1}")
    if i < 15:
        e(f"    s_add_u32 s{sT1}, s{sT1}, {1 << shj}")
        e(f"    s_and_b32 s{sT1}, s{sT1}, {15 << shj}")
e(f"    s_lshl_b32 s{sPID}, s{sPROB}, 5")
e(f"    s_add_u32 s{sPID}, s{sPID}, s{sHEAD}")
e(f"    s_lshl_b32 s{sPID}, s{sPID}, 2")
e(f"    s_add_u32 s{sPID}, s{sPID}, s{sSPL}")
e(f"    s_lshl_b32 s{sT0}, s{sPID}, 11")
e(f"    s_lshl_b32 s{sT1}, s{sWAVE}, 7")
e(f"    s_add_u32 s{sT0}, s{sT0}, s{sT1}")
e(f"    s_lshl_b32 s{sT1}, s{sPID}, 4")
e(f"    s_add_u32 s{sT1}, s{sT1}, {WS_ML}")
e(f"    v_add_u32 v{vY}, s{sT0}, v{vKV}")
e(f"    v_mov_b32 v{vA[0]}, -1")
e(f"    v_mov_b32 v{vA[0]+1}, -1")
e(f"    v_writelane_b32 v{vY}, s{sT1}, 8")
e(f"    v_mov_b32 v{vA[0]+2}, -1")
e(f"    v_mov_b32 v{vA[0]+3}, -1")
e(f"    s_movk_i32 s{sT2}, 0xff")
e(f"    s_cmp_eq_u32 s{sWAVE}, 0")
e(f"    s_cselect_b32 exec_lo, 0x1ff, s{sT2}")
e(f"    s_mov_b32 exec_hi, 0")
e(f"    buffer_store_dwordx4 {r4(vA[0])}, v{vY}, {s4(SW)}, 0 offen sc1")
e(f"    s_mov_b64 exec, -1")
if not NOB: e("    s_barrier")
for j in range(16):
    pace()
    e(f"    buffer_load_dwordx4 {r4(vK+4*j)}, v{vKV}, {s4(SK)}, s{4+j} offen{NT}")
e(f"    v_and_b32 v{vT2}, 1, v0")
e(f"    v_lshlrev_b32 v{vT2}, 4, v{vT2}")
e(f"    s_mov_b32 s{sT0}, 0xffff")
e(f"    v_lshlrev_b32 v{vT2}, v{vT2}, s{sT0}")
e(f"    v_bfe_u32 v{vT}, v0, 1, 2")
for r in range(4):
    e(f"    v_cmp_eq_u32 vcc, {r}, v{vT}")
    e("    s_nop 1")
    e(f"    v_cndmask_b32 v{vM+r}, 0, v{vT2}, vcc")
e(f"    s_mov_b32 s{sSELLO}, 0x01000100")
e(f"    s_mov_b32 s{sSELHI}, 0x03020302")
e(f"    s_mov_b32 s{sM1}, 0xcccccccc")
e(f"    s_mov_b32 s{sM1+1}, 0xcccccccc")
e(f"    s_mov_b32 s{sM0}, 0xaaaaaaaa")
e(f"    s_mov_b32 s{sM0+1}, 0xaaaaaaaa")
e(f"    s_lshl_b32 s{sWO0}, s{sHEAD}, 17")
e(f"    s_lshr_b32 s{sT0}, s{sWAVE}, 2")
e(f"    s_lshl_b32 s{sT0}, s{sT0}, 15")
e(f"    s_add_u32 s{sWO0}, s{sWO0}, s{sT0}")
e(f"    s_and_b32 s{sT0}, s{sWAVE}, 3")
e(f"    s_lshl_b32 s{sT0}, s{sT0}, 8")
e(f"    s_add_u32 s{sWO0}, s{sWO0}, s{sT0}")
e(f"    s_add_u32 s{sWO1}, s{sWO0}, 4096")
if WOX:
    e(f"    s_mov_b32 s{sWO1}, 0x800000")
stamp(1)

def vload(j, reg):
    pace()
    e(f"    buffer_load_dwordx4 {r4(reg)}, v{vKV}, {s4(SV)}, s{4+j} offen{NT}")
def woload(j, reg):
    pace()
    e(f"    buffer_load_dwordx4 {r4(reg)}, v{vWO}, {s4(SO)}, s{sWO0+(j//4 if not WOX else int(j >= 2))} offen offset:{1024*(j%4)}{NTW}")

for j in range(8):
    A = vA[j % 2]
    e("    s_waitcnt vmcnt(24)")
    e(f"    v_perm_b32 v{vT}, v{vX+j//2}, v{vX+j//2}, s{sSELHI if j%2 else sSELLO}")
    for r in range(4):
        e(f"    v_and_b32 v{A+r}, v{vT}, v{vM+r}")
    e("    s_nop 1")
    c = "0" if j == 0 else r4(vD)
    e(f"    v_mfma_f32_16x16x32_bf16 {r4(vD)}, {r4(A)}, {r4(vW+4*j)}, {c}")
    vload(j, vW+4*j)
e(f"    s_lshl_b32 s{sT0}, s{sWAVE}, 9")
e(f"    v_add_u32 v{vT}, s{sT0}, v{vKV}")
e(f"    v_lshrrev_b32 v{vT2}, 4, v0")
e(f"    v_and_b32 v{vY}, 15, v0")
e(f"    v_lshlrev_b32 v{vY}, 4, v{vY}              ; i*16")
e(f"    v_lshl_add_u32 v{vY+1}, v{vT2}, 11, v{vY}    ; g*2048 + i*16")
e(f"    s_lshl_b32 s{sT0}, s{sWAVE}, 8")
e(f"    s_add_u32 s{sT0}, s{sT0}, {L_QB}")
e(f"    v_add_u32 v{vY}, s{sT0}, v{vY}")
e(f"    v_lshl_add_u32 v{vY+2}, v{vT2}, 2, v{vY}")
e("    s_mov_b32 exec_hi, 0")
e(f"    ds_write_b128 v{vT}, {r4(vD)} offset:{L_QP}")
e("    s_mov_b32 exec_hi, -1")
e("    s_waitcnt lgkmcnt(0)")
e("    s_barrier")
a, b = vA[0], vA[1]
e(f"    ds_read_b128 {r4(a)}, v{vY+1} offset:{L_QP}")
e(f"    ds_read_b128 {r4(b)}, v{vY+1} offset:{L_QP+256}")
e(f"    ds_read_b128 {r4(vD)}, v{vY+1} offset:{L_QP+512}")
e(f"    ds_read_b128 {r4(vX)}, v{vY+1} offset:{L_QP+512+256}")
for k in (1, 2, 3):
    e("    s_waitcnt lgkmcnt(1)")
    for r in range(4):
        e(f"    v_add_f32 v{a+r}, v{a+r}, v{vD+r}")
    if k < 3:
        e(f"    ds_read_b128 {r4(vD)}, v{vY+1} offset:{L_QP+512*(k+1)}")
        e("    s_waitcnt lgkmcnt(1)")
    else:
        e("    s_waitcnt lgkmcnt(0)")
    for r in range(4):
        e(f"    v_add_f32 v{b+r}, v{b+r}, v{vX+r}")
    if k < 3:
        e(f"    ds_read_b128 {r4(vX)}, v{vY+1} offset:{L_QP+512*(k+1)+256}")
e("    s_nop 1")
for r in range(4):
    e(f"    v_permlane32_swap_b32 v{a+r}, v{b+r}")
for r in range(4):
    e(f"    v_add_f32 v{a+r}, v{a+r}, v{b+r}")
e("    s_nop 1")
e(f"    v_permlane16_swap_b32 v{a}, v{a+2}")
e(f"    v_permlane16_swap_b32 v{a+1}, v{a+3}")
e(f"    v_add_f32 v{a}, v{a}, v{a+2}")
e(f"    v_add_f32 v{a+1}, v{a+1}, v{a+3}")
e(f"    v_cvt_pk_bf16_f32 v{a}, v{a}, v{a+1}")
e(f"    ds_write_b32 v{vY+2}, v{a}")
e(f"    ds_read_b128 {r4(vX)}, v{vY}")
e("    s_waitcnt lgkmcnt(0)")
stamp(2)

S = [14, 15]; T = [16, 17]; U = [18, 19]; Wd = [20, 21]
DPP = "row_mask:0xf bank_mask:"
for j in range(16):
    s = S[j % 2]
    e("    s_waitcnt vmcnt(23)")
    kb = vK + 4*j
    e(f"    v_dot2_f32_bf16 v{s}, v{kb}, v{vX}, 0")
    for r in range(1, 4):
        e(f"    v_dot2_f32_bf16 v{s}, v{kb+r}, v{vX+r}, v{s}")
    if j < 8:
        vload(8 + j, kb)
    else:
        woload(j - 8, kb)
    if j % 2 == 1:
        t = T[(j//2) % 2]
        e("    s_nop 1")
        e(f"    v_add_f32_dpp v{t}, v{S[0]}, v{S[0]} row_ror:8 {DPP}0x3")
        e(f"    v_add_f32_dpp v{t}, v{S[1]}, v{S[1]} row_ror:8 {DPP}0xc")
    if j % 4 == 3:
        u = U[(j//4) % 2]
        e(f"    v_add_f32_dpp v{u}, v{T[0]}, v{T[0]} row_half_mirror {DPP}0x5")
        e("    s_nop 0")
        e(f"    v_add_f32_dpp v{u}, v{T[1]}, v{T[1]} row_half_mirror {DPP}0xa")
    if j % 8 == 7:
        w = Wd[j//8]
        e(f"    v_add_f32_dpp v{vT}, v{U[0]}, v{U[0]} quad_perm:[2,3,0,1] {DPP}0xf")
        e("    s_nop 0")
        e(f"    v_add_f32_dpp v{vT2}, v{U[1]}, v{U[1]} quad_perm:[2,3,0,1] {DPP}0xf")
        e(f"    v_cndmask_b32 v{w}, v{vT}, v{vT2}, s[{sM1}:{sM1+1}]")
e(f"    v_add_f32_dpp v{vT}, v{Wd[0]}, v{Wd[0]} quad_perm:[1,0,3,2] {DPP}0xf")
e("    s_nop 0")
e(f"    v_add_f32_dpp v{vT2}, v{Wd[1]}, v{Wd[1]} quad_perm:[1,0,3,2] {DPP}0xf")
e(f"    v_cndmask_b32 v{vS}, v{vT}, v{vT2}, s[{sM0}:{sM0+1}]")
e(f"    v_cvt_pk_bf16_f32 v{vS}, v{vS}, v{vS}")
e(f"    v_and_b32 v{vS}, 0xffff0000, v{vS}")
e(f"    v_mul_f32 v{vS}, 0x3db504f3, v{vS}")
e(f"    v_cvt_pk_bf16_f32 v{vS}, v{vS}, v{vS}")
e(f"    v_and_b32 v{vS}, 0xffff0000, v{vS}")

def row_reduce(op, dst, src):
    e("    s_nop 1")
    e(f"    {op}_dpp v{dst}, v{src}, v{src} row_ror:8 {DPP}0xf")
    for n in (4, 2, 1):
        e("    s_nop 1")
        e(f"    {op}_dpp v{dst}, v{dst}, v{dst} row_ror:{n} {DPP}0xf")
def xrow_reduce(op, dst, tmp):
    for sw in ("16", "32"):
        e(f"    v_mov_b32 v{tmp}, v{dst}")
        e("    s_nop 1")
        e(f"    v_permlane{sw}_swap_b32 v{dst}, v{tmp}")
        e(f"    {op} v{dst}, v{dst}, v{tmp}")
row_reduce("v_max_f32", vT, vS)
xrow_reduce("v_max_f32", vT, vT2)
e(f"    s_lshl_b32 s{sT0}, s{sWAVE}, 2")
e(f"    v_mov_b32 v{vY}, s{sT0}")
e(f"    v_and_b32 v{vY+1}, 15, v0")
e(f"    v_lshlrev_b32 v{vY+1}, 2, v{vY+1}          ; i*4")
e(f"    ds_write_b32 v{vY}, v{vT} offset:{L_M}")
e("    s_waitcnt lgkmcnt(0)")
e("    s_barrier")
e(f"    ds_read_b32 v{vT}, v{vY+1} offset:{L_M}")
e(f"    s_cmp_lg_u32 s{sWAVE}, 0")
e("    s_cbranch_scc1 L_noadd")
e(f"    s_lshl_b32 s{sT0}, s{sPROB}, 7")
e(f"    v_mov_b32 v{vY+2}, s{sT0}")
e(f"    v_mov_b32 v{vT2}, 1")
e("    s_mov_b64 exec, 1")
e(f"    buffer_atomic_add v{vT2}, v{vY+2}, {s4(SD)}, 0 offen sc1")
e("    s_mov_b64 exec, -1")
e("L_noadd:")
e("    s_waitcnt lgkmcnt(0)")
vMX = vY + 3
row_reduce("v_max_f32", vMX, vT)
e(f"    v_sub_f32 v{vS}, v{vS}, v{vMX}")
e(f"    v_mul_f32 v{vS}, 0x3fb8aa3b, v{vS}")
e(f"    v_exp_f32 v{vS}, v{vS}")
e("    s_nop 0")
e(f"    v_cvt_pk_bf16_f32 v{vP}, v{vS}, v{vS}")
row_reduce("v_add_f32", vT, vS)
xrow_reduce("v_add_f32", vT, vT2)
e(f"    ds_write_b32 v{vY}, v{vT} offset:{L_L}")
stamp(3)

def bc_mfma(src, lane, data, j, first):
    A = vA[j % 2]
    for r in range(4):
        e(f"    v_and_b32_dpp v{A+r}, v{src}, v{vM+r} row_newbcast:{lane} {DPP}0xf")
def vreg(j): return vW + 4*j if j < 8 else vK + 4*(j-8)
bc_mfma(vP, brev(0), None, 0, True)
for j in range(16):
    if j < 15:
        bc_mfma(vP, brev(j+1), None, j+1, False)
    e(f"    s_waitcnt vmcnt({23-j})")
    if j == 15:
        e("    s_nop 0")
    c = "0" if j == 0 else r4(vD)
    e(f"    v_mfma_f32_16x16x32_bf16 {r4(vD)}, {r4(vA[j%2])}, {r4(vreg(j))}, {c}")
e(f"    s_and_b32 s{sT0}, s{sHEAD}, 1")
e(f"    s_or_b32 s{sCONS}, s{sT0}, s{sSPL}          ; 0 -> consumer")
e(f"    s_or_b32 s{sT0}, s{sCONS}, s{sWAVE}")
e(f"    s_cmp_lg_u32 s{sT0}, 0")
e("    s_cbranch_scc1 L_nocnt")
e(f"    buffer_load_dword v{vS}, v{vY+2}, {s4(SD)}, 0 offen sc1")
e("L_nocnt:")
e(f"    s_mul_i32 s{sT0}, s{sWAVE}, 576")
e(f"    v_lshrrev_b32 v{vT}, 4, v0               ; g")
e(f"    v_lshlrev_b32 v{vT2}, 5, v{vT}")
e(f"    v_add3_u32 v{vT2}, v{vT2}, v{vKV}, s{sT0}")
e(f"    s_lshr_b32 s{sT0}, s{sWAVE}, 2")
e(f"    s_lshl_b32 s{sT0}, s{sT0}, 6")
e(f"    v_lshl_add_u32 v{vT}, v{vT}, 4, s{sT0}")
e(f"    v_and_b32 v{vX}, 3, v0")
e(f"    v_lshl_add_u32 v{vT}, v{vX}, 2, v{vT}")
e(f"    v_bfe_u32 v{vX}, v0, 2, 1")
e(f"    v_mul_u32_u24 v{vX}, 288, v{vX}")
e(f"    v_bfe_u32 v{vX+1}, v0, 3, 1")
e(f"    v_mul_u32_u24 v{vX+1}, 576, v{vX+1}")
e(f"    v_add3_u32 v{vT}, v{vT}, v{vX}, v{vX+1}")
e("    s_mov_b32 exec_hi, 0")
e(f"    ds_write_b128 v{vT2}, {r4(vD)} offset:{L_OP}")
e("    s_mov_b32 exec_hi, -1")
e("    s_waitcnt lgkmcnt(0)")
e("    s_barrier")
stamp(4)
for k in range(8):
    e(f"    ds_read_b32 v{vW+k}, v{vT} offset:{L_OP+1152*k}")
e(f"    ds_read_b32 v{vW+8}, v{vY+1} offset:{L_L}")
e("    s_waitcnt lgkmcnt(5)")
e(f"    v_add_f32 v{vW}, v{vW}, v{vW+1}")
e(f"    v_add_f32 v{vW+2}, v{vW+2}, v{vW+3}")
e("    s_waitcnt lgkmcnt(1)")
e(f"    v_add_f32 v{vW+4}, v{vW+4}, v{vW+5}")
e(f"    v_add_f32 v{vW+6}, v{vW+6}, v{vW+7}")
e(f"    v_add_f32 v{vW}, v{vW}, v{vW+2}")
e(f"    v_add_f32 v{vW+4}, v{vW+4}, v{vW+6}")
e(f"    v_add_f32 v{vW}, v{vW}, v{vW+4}")
e("    s_nop 1")
e(f"    v_add_f32_dpp v{vW}, v{vW}, v{vW} row_ror:8 {DPP}0xf")
e(f"    v_cvt_pk_bf16_f32 v{vP}, v{vW}, v{vW}")
e(f"    s_cmp_lg_u32 s{sWAVE}, 15")
e("    s_cbranch_scc1 L_noml")
e("    s_waitcnt lgkmcnt(0)")
row_reduce("v_add_f32", vW+9, vW+8)
e(f"    v_min_u32 v{vW+10}, -2, v{vMX}")
e(f"    v_min_u32 v{vW+11}, -2, v{vW+9}")
e(f"    s_lshl_b32 s{sT1}, s{sPID}, 4")
e(f"    s_add_u32 s{sT1}, s{sT1}, {WS_ML}")
e(f"    v_mov_b32 v{vW+9}, s{sT1}")
e("    s_mov_b64 exec, 1")
e(f"    buffer_store_dwordx2 v[{vW+10}:{vW+11}], v{vW+9}, {s4(SW)}, 0 offen sc1")
e("    s_mov_b64 exec, -1")
e("L_noml:")
e("    s_nop 0")
bc_mfma(vP, 0, None, 0, True)
for j in range(8):
    if j < 7:
        bc_mfma(vP, j+1, None, j+1, False)
    e(f"    s_waitcnt vmcnt({7-j})")
    if j == 7:
        e("    s_nop 0")
    c = "0" if j == 0 else r4(vD)
    e(f"    v_mfma_f32_16x16x32_bf16 {r4(vD)}, {r4(vA[j%2])}, {r4(vK+32+4*j)}, {c}")
e(f"    s_lshl_b32 s{sT0}, s{sWAVE}, 9")
e(f"    v_and_b32 v{vT}, 15, v0")
e(f"    v_lshlrev_b32 v{vT}, 5, v{vT}")
e(f"    v_and_b32 v{vT2}, 16, v0")
e(f"    v_add3_u32 v{vT}, v{vT}, v{vT2}, s{sT0}")
e(f"    s_or_b32 s{sT0}, s{sCONS}, s{sWAVE}")
e(f"    s_cmp_lg_u32 s{sT0}, 0")
e("    s_cbranch_scc1 L_cntok")
e("L_cnt:")
e(f"    v_readfirstlane_b32 s{sT0}, v{vS}")
e(f"    s_cmp_ge_u32 s{sT0}, 128")
e("    s_cbranch_scc1 L_cntok")
e(f"    buffer_load_dword v{vS}, v{vY+2}, {s4(SD)}, 0 offen sc1")
e("    s_waitcnt vmcnt(0)")
e("    s_branch L_cnt")
e("L_cntok:")
e("    s_nop 1")
e("    s_mov_b32 exec_hi, 0")
e(f"    ds_write_b128 v{vT}, {r4(vD)} offset:{L_YP}")
e("    s_mov_b32 exec_hi, -1")
e("    s_waitcnt lgkmcnt(0)")
e("    s_barrier")
e(f"    s_cmp_gt_u32 s{sWAVE}, 1")
e("    s_cbranch_scc1 L_published")
e(f"    s_lshl_b32 s{sT0}, s{sWAVE}, 10")
e(f"    v_add_u32 v{vT}, s{sT0}, v{vKV}")
for k in range(4):
    e(f"    ds_read_b128 {r4(vW+4*k)}, v{vT} offset:{L_YP+2048*k}")
e(f"    s_lshl_b32 s{sT0}, s{sPID}, 11")
e("    s_waitcnt lgkmcnt(2)")
for r in range(4):
    e(f"    v_add_f32 v{vW+r}, v{vW+r}, v{vW+4+r}")
e("    s_waitcnt lgkmcnt(0)")
for r in range(4):
    e(f"    v_add_f32 v{vW+8+r}, v{vW+8+r}, v{vW+12+r}")
for r in range(4):
    e(f"    v_add_f32 v{vW+r}, v{vW+r}, v{vW+8+r}")
for r in range(4):
    e(f"    v_min_u32 v{vW+r}, -2, v{vW+r}")
e(f"    buffer_store_dwordx4 {r4(vW)}, v{vT}, {s4(SW)}, s{sT0} offen sc1")
e("L_published:")
stamp(5)
if DIAG:
    e(f"    s_cmp_lg_u32 s{sWAVE}, 0")
    e("    s_cbranch_scc1 L_nodiag")
    e("    s_waitcnt lgkmcnt(0)")
    for i in range(6):
        e(f"    v_writelane_b32 v{vK}, s{sTS+2*i}, {i}")
    e(f"    s_getreg_b32 s{sT0}, hwreg(HW_REG_XCC_ID)")
    e(f"    v_writelane_b32 v{vK}, s{sT0}, 7")
    e(f"    s_lshl_b32 s{sT0}, s2, 6")
    e(f"    s_add_u32 s{sT0}, s{sT0}, {WS_DIAG}")
    e(f"    v_lshlrev_b32 v{vK+1}, 2, v0")
    e("    s_mov_b64 exec, 0xbf")
    e(f"    buffer_store_dword v{vK}, v{vK+1}, {s4(SW)}, s{sT0} offen")
    if DIAG == 2:
        e("    s_mov_b64 exec, 0x3f")
        e(f"    buffer_atomic_umax v{vK}, v{vK+1}, {s4(SD)}, 0 offen offset:8 sc1")
        e(f"    v_not_b32 v{vK+2}, v{vK}")
        e(f"    buffer_atomic_umax v{vK+2}, v{vK+1}, {s4(SD)}, 0 offen offset:36 sc1")
    e("    s_mov_b64 exec, -1")
    e("L_nodiag:")
e(f"    s_cmp_lg_u32 s{sCONS}, 0")
e("    s_cbranch_scc1 L_end")
e(f"    s_lshl_b32 s{sT0}, s{sPROB}, 4")
e(f"    s_add_u32 s{sT0}, s{sT0}, s{sWAVE}")
e(f"    s_lshl_b32 s{sT0}, s{sT0}, 3")
e(f"    v_lshrrev_b32 v{vT}, 3, v0")
e(f"    v_add_u32 v{vT}, s{sT0}, v{vT}              ; p")
e(f"    v_lshlrev_b32 v{vT2}, 4, v{vT}")
e(f"    v_and_b32 v{vX}, 7, v0")
e(f"    v_lshlrev_b32 v{vX}, 4, v{vX}")
e(f"    v_lshl_add_u32 v{vT}, v{vT}, 11, v{vX}       ; y offset")
e(f"    s_lshl_b32 s{sT0}, s{sHEAD}, 6             ; cons*128")
e(f"    s_mov_b32 s{sT1}, {WS_ML}")
Y = vK + 8; ML = vK + 12
e("L_poll:")
e(f"    buffer_load_dwordx4 {r4(Y)}, v{vT}, {s4(SW)}, s{sT0} offen sc1")
e(f"    buffer_load_dwordx2 v[{ML}:{ML+1}], v{vT2}, {s4(SW)}, s{sT1} offen sc1")
e("    s_waitcnt vmcnt(0)")
e(f"    v_max3_u32 v{vX}, v{Y}, v{Y+1}, v{Y+2}")
e(f"    v_max3_u32 v{vX+1}, v{Y+3}, v{ML}, v{ML+1}")
e(f"    v_max_u32 v{vX}, v{vX}, v{vX+1}")
e(f"    v_cmp_eq_u32 vcc, -1, v{vX}")
e("    s_cbranch_vccnz L_poll")
e(f"    v_max_f32_dpp v{vX}, v{ML}, v{ML} row_ror:8 {DPP}0xf")
e(f"    v_mov_b32 v{vX+1}, v{vX}")
e("    s_nop 1")
e(f"    v_permlane16_swap_b32 v{vX}, v{vX+1}")
e(f"    v_max_f32 v{vX}, v{vX}, v{vX+1}")
e(f"    v_sub_f32 v{vX}, v{ML}, v{vX}")
e(f"    v_mul_f32 v{vX}, 0x3fb8aa3b, v{vX}")
e(f"    v_exp_f32 v{vX}, v{vX}")
e("    s_nop 0")
e(f"    v_mul_f32 v{vX+1}, v{vX}, v{ML+1}")
e("    s_nop 1")
e(f"    v_add_f32_dpp v{vX+1}, v{vX+1}, v{vX+1} row_ror:8 {DPP}0xf")
e(f"    v_mov_b32 v{vX+2}, v{vX+1}")
e("    s_nop 1")
e(f"    v_permlane16_swap_b32 v{vX+1}, v{vX+2}")
e(f"    v_add_f32 v{vX+1}, v{vX+1}, v{vX+2}")
e(f"    v_rcp_f32 v{vX+1}, v{vX+1}")
e("    s_nop 0")
e(f"    v_mul_f32 v{vX}, v{vX}, v{vX+1}")
for r in range(4):
    e(f"    v_mul_f32 v{Y+r}, v{Y+r}, v{vX}")
for r in range(4):
    e(f"    v_add_f32_dpp v{Y+r}, v{Y+r}, v{Y+r} row_ror:8 {DPP}0xf")
e(f"    v_permlane16_swap_b32 v{Y}, v{Y+1}")
e("    s_nop 0")
e(f"    v_permlane16_swap_b32 v{Y+2}, v{Y+3}")
e(f"    v_add_f32 v{Y}, v{Y}, v{Y+1}")
e(f"    v_add_f32 v{Y+2}, v{Y+2}, v{Y+3}")
e(f"    s_lshl_b32 s{sT0}, s{sWAVE}, 7")
e(f"    v_and_b32 v{vT}, 7, v0")
e(f"    v_lshrrev_b32 v{vT2}, 4, v0")
e(f"    v_permlane32_swap_b32 v{Y}, v{Y+2}")
e(f"    v_lshl_add_u32 v{vT}, v{vT}, 2, v{vT2}")
e(f"    v_lshl_add_u32 v{vT}, v{vT}, 2, s{sT0}")
e(f"    v_add_f32 v{Y}, v{Y}, v{Y+2}")
e(f"    ds_write_b32 v{vT}, v{Y} offset:{L_RED}")
e("    s_waitcnt lgkmcnt(0)")
e("    s_barrier")
e(f"    s_cmp_lg_u32 s{sWAVE}, 0")
e("    s_cbranch_scc1 L_end")
e(f"    v_and_b32 v{vT}, 31, v0")
e(f"    v_lshrrev_b32 v{vT2}, 5, v0")
e(f"    v_lshlrev_b32 v{vT2}, 10, v{vT2}")
e(f"    v_lshl_add_u32 v{vT2}, v{vT}, 2, v{vT2}")
for k in range(8):
    e(f"    ds_read_b32 v{vW+k}, v{vT2} offset:{L_RED+128*k}")
e(f"    s_lshl_b32 s{sT0}, s{sPROB}, 10")
e(f"    s_lshl_b32 s{sT1}, s{sHEAD}, 5             ; cons*64")
e(f"    s_add_u32 s{sT0}, s{sT0}, s{sT1}")
e(f"    v_lshlrev_b32 v{vT}, 1, v{vT}")
e("    s_waitcnt lgkmcnt(4)")
e(f"    v_add_f32 v{vW}, v{vW}, v{vW+1}")
e(f"    v_add_f32 v{vW+2}, v{vW+2}, v{vW+3}")
e("    s_waitcnt lgkmcnt(0)")
e(f"    v_add_f32 v{vW+4}, v{vW+4}, v{vW+5}")
e(f"    v_add_f32 v{vW+6}, v{vW+6}, v{vW+7}")
e(f"    v_add_f32 v{vW}, v{vW}, v{vW+2}")
e(f"    v_add_f32 v{vW+4}, v{vW+4}, v{vW+6}")
e(f"    v_add_f32 v{vW}, v{vW}, v{vW+4}")
e(f"    v_mov_b32 v{vW+1}, v{vW}")
e("    s_nop 1")
e(f"    v_permlane32_swap_b32 v{vW}, v{vW+1}")
e(f"    v_add_f32 v{vW}, v{vW}, v{vW+1}")
e(f"    v_cvt_pk_bf16_f32 v{vW}, v{vW}, v{vW}")
e("    s_mov_b32 exec_hi, 0")
e(f"    buffer_store_short v{vW}, v{vT}, {s4(SOUT)}, s{sT0} offen")
if DIAG:
    e(f"    s_memrealtime s[{sTS}:{sTS+1}]")
    e("    s_waitcnt lgkmcnt(0)")
    e(f"    v_mov_b32 v{vK}, s{sTS}")
    e(f"    s_lshl_b32 s{sT0}, s2, 6")
    e(f"    s_add_u32 s{sT0}, s{sT0}, {WS_DIAG+24}")
    e(f"    v_mov_b32 v{vK+1}, 0")
    e("    s_mov_b64 exec, 1")
    e(f"    buffer_store_dword v{vK}, v{vK+1}, {s4(SW)}, s{sT0} offen")
    if DIAG == 2:
        e(f"    buffer_atomic_umax v{vK}, v{vK+1}, {s4(SD)}, 0 offen offset:32 sc1")
e("L_end:")
e("    s_endpgm")
e('.section .rodata,"a"')
e(".p2align 6")
e(f".amdhsa_kernel {NAME}_kernel")
e("  .amdhsa_next_free_vgpr 128")
e("  .amdhsa_next_free_sgpr 102")
e("  .amdhsa_accum_offset 128")
e("  .amdhsa_group_segment_fixed_size 0")
e("  .amdhsa_kernarg_size 104")
e("  .amdhsa_user_sgpr_count 2")
e("  .amdhsa_user_sgpr_kernarg_segment_ptr 1")
e("  .amdhsa_system_sgpr_workgroup_id_x 1")
e(".end_amdhsa_kernel")
open(sys.argv[1], "w").write("\n".join(L) + "\n")
```

```python
import sys
NAME = "concat_heads__gqa_block_cached__gqa_block_cached__decode"
opts = dict(a.split("=") for a in sys.argv[2:])
DIAG = int(opts.get("diag", 0)); D = int(opts.get("d", 16)); ORD = opts.get("o", "j"); ROT = int(opts.get("r", 1))
MLB = int(opts.get("mlb", 4)); NSLOT = int(opts.get("ns", 20))
L = []
def e(s=""): L.append(s)
def brev(j): return int(f"{j:04b}"[::-1], 2)
def r4(b): return f"v[{b}:{b+3}]"
def s4(b): return f"s[{b}:{b+3}]"
hdr = open("cdna_kernels/%s.s.ref" % NAME).read().split("\n")
for ln in hdr:
    if ln.startswith("; @launch"):
        e("; @launch grid=(256,1,1) block=(256,1,1) lds=4608"); break
    e(ln)
e('.amdgcn_target "amdgcn-amd-amdhsa--gfx950"'); e(".text"); e(f".globl {NAME}_kernel"); e(".p2align 8")
e(f".type {NAME}_kernel,@function"); e(f"{NAME}_kernel:")
SX, SK, SV, SQ, SO, SW, SD, SOUT = 32, 36, 40, 44, 48, 52, 56, 84
sHEAD, sSPL, sPROB, sWAVE, sPID = 60, 61, 62, 63, 64
sT0, sT1, sT2 = 65, 66, 67
sKV, sRK, sRV, sWQ, sWO = 68, 69, 70, 71, 72
sLO, sHI, sDLO, sDHI = 73, 74, 75, 76
sM1, sM0 = 78, 80
sYS, sCY, sOO = 77, 82, 83
sTS = 88
vKV, vWQ, vWO, vT, vT2 = 1, 2, 3, 4, 5
vM, vQ, vA, vD, vP = 6, 10, [14, 18], 22, 26
S = [30, 31]; T = [32, 33]; U = [34, 35]; Wd = [36, 37]
vOW, vOR, vYS, vCY, vCM, vRW, vML = 38, 39, 40, 41, 42, 43, 44
vR = 48; vB = 128
vXR, vXD = vB, vB + 4
vCNT, vMX = 30, 31
L_QP, L_M, L_OP, L_RED = 0, 2048, 2304, 4352
WS_ML = 512 * 1024; WS_DIAG = 1024 * 1024
DPP = "row_mask:0xf bank_mask:"
def stamp(i):
    if DIAG: e(f"    s_memrealtime s[{sTS+2*i}:{sTS+2*i+1}]")

nissued = 0; done = -1
def vm(txt):
    global nissued
    e("    " + txt); nissued += 1; return nissued - 1
def wait(op):
    global done
    if op > done:
        e(f"    s_waitcnt vmcnt({nissued - 1 - op})"); done = op
free = list(range(NSLOT)); slot = {}; opid = {}

def mix(a, b, ra, rb):
    out = []; a = list(a); b = list(b)
    while a or b:
        out += a[:ra]; a = a[ra:]; out += b[:rb]; b = b[rb:]
    return out
q = [("q", j) for j in range(32)]; k = [("k", j) for j in range(64)]; v = [("v", j) for j in range(64)]; w = [("o", j) for j in range(32)]
seq = mix(q, v[:32], 1, 1) if ORD.islower() else mix(v[:32], q, 1, 1)
o_ = ORD.lower()
if o_ == "h": seq += mix(w, k, 1, 1)
elif o_ == "j": seq += mix(k, w, 2, 1)
elif o_ == "k": seq += k[:32] + mix(w, k[32:], 1, 1)
seq += v[32:]

def issue(t, j):
    if t == "v" and j < 32: dst = f"a[{4*j}:{4*j+3}]"
    else:
        slot[(t, j)] = vR + 4 * free.pop(0); dst = r4(slot[(t, j)])
    if t == "q":
        opid[(t, j)] = vm(f"buffer_load_dwordx4 {dst}, v{vWQ}, {s4(SQ)}, s{sWQ} offen nt")
        if j < 31: e(f"    s_add_u32 s{sWQ}, s{sWQ}, {8192 if j % 8 < 7 else 25*8192}")
    elif t == "o":
        opid[(t, j)] = vm(f"buffer_load_dwordx4 {dst}, v{vWO}, {s4(SO)}, s{sWO} offen offset:{1024*(j%4)} nt")
        if j % 4 == 3 and j < 31: e(f"    s_add_u32 s{sWO}, s{sWO}, {4096 if j % 8 < 7 else 28*1024}")
    else:
        s = sRK if t == "k" else sRV
        e(f"    s_add_u32 s{sT2}, s{sKV}, s{s}")
        opid[(t, j)] = vm(f"buffer_load_dwordx4 {dst}, v{vKV}, {s4(SK if t == 'k' else SV)}, s{sT2} offen nt")
        if j < 63:
            e(f"    s_add_u32 s{s}, s{s}, 1024"); e(f"    s_and_b32 s{s}, s{s}, 0xfc00")
def release(t, j): free.append((slot[(t, j)] - vR) // 4)

stamp(0)
e("    s_cmp_ge_u32 s2, 256"); e("    s_cbranch_scc1 L_end")
e("    s_load_dwordx16 s[4:19], s[0:1], 0"); e("    s_load_dwordx8 s[20:27], s[0:1], 64"); e("    s_load_dwordx2 s[28:29], s[0:1], 96")
e("    v_lshrrev_b32 v4, 6, v0"); e("    v_and_b32 v0, 63, v0                  ; lane")
e(f"    v_readfirstlane_b32 s{sWAVE}, v4")
e(f"    s_lshr_b32 s{sT0}, s2, 5"); e(f"    s_and_b32 s{sT1}, s2, 7"); e(f"    s_lshr_b32 s{sPROB}, s2, 7")
e(f"    s_and_b32 s{sT0}, s{sT0}, 3"); e(f"    s_lshl_b32 s{sT0}, s{sT0}, 3")
e(f"    s_or_b32 s{sHEAD}, s{sT0}, s{sT1}          ; head 0..31")
e(f"    s_bfe_u32 s{sSPL}, s2, 0x20003            ; split 0..3")
e(f"    v_lshlrev_b32 v{vKV}, 4, v0              ; lane*16")
e(f"    v_lshrrev_b32 v{vT}, 4, v0               ; g")
e(f"    v_and_b32 v{vT2}, 15, v0                 ; i")
e(f"    v_lshlrev_b32 v{vT2}, 4, v{vT2}")
e(f"    v_lshl_add_u32 v{vWQ}, v{vT}, 16, v{vT2}     ; g*8*8192 + i*16")
e(f"    v_lshl_add_u32 v{vWO}, v{vT}, 13, v{vT2}     ; g*8*1024 + i*16")
e(f"    v_and_b32 v{vD}, 3, v0"); e(f"    v_lshlrev_b32 v{vD}, 6, v{vD}")
e(f"    v_lshl_add_u32 v{vD}, v{vT}, 4, v{vD}       ; x: (i&3)*64 + g*16")
e(f"    s_lshl_b32 s{sT0}, s{sWAVE}, 8             ; x soffset")
e(f"    s_lshl_b32 s{sWQ}, s{sWAVE}, 20"); e(f"    s_lshl_b32 s{sT1}, s{sHEAD}, 8"); e(f"    s_add_u32 s{sWQ}, s{sWQ}, s{sT1}")
e(f"    s_lshl_b32 s{sKV}, s{sHEAD}, 20"); e(f"    s_lshl_b32 s{sT1}, s{sSPL}, 18"); e(f"    s_add_u32 s{sKV}, s{sKV}, s{sT1}")
e(f"    s_lshl_b32 s{sT1}, s{sWAVE}, 16"); e(f"    s_add_u32 s{sKV}, s{sKV}, s{sT1}")
a_, b_, c_ = {1: (3, 4, 0), 4: (3, 4, 1), 7: (5, 20, 0)}[ROT]
e(f"    s_lshl_b32 s{sRK}, s{sPROB}, {a_}"); e(f"    s_add_u32 s{sRK}, s{sRK}, s{sHEAD}")
e(f"    s_mul_i32 s{sT1}, s{sWAVE}, {b_}"); e(f"    s_add_u32 s{sRK}, s{sRK}, s{sT1}")
if c_: e(f"    s_add_u32 s{sRK}, s{sRK}, s{sSPL}")
e(f"    s_and_b32 s{sRK}, s{sRK}, 63"); e(f"    s_lshl_b32 s{sRK}, s{sRK}, 10"); e(f"    s_mov_b32 s{sRV}, s{sRK}")
e(f"    s_lshl_b32 s{sWO}, s{sHEAD}, 17"); e(f"    s_add_u32 s{sWO}, s{sWO}, s{sT0}")
for b, n in ((SX, 1024), (SQ, 0x400000), (SK, 0x2000000), (SV, 0x2000000), (SO, 0x400000), (SW, 0x200000), (SD, 256), (SOUT, 2048)):
    e(f"    s_mov_b32 s{b+2}, {n}"); e(f"    s_mov_b32 s{b+3}, 0x20000")
e(f"    s_cmp_eq_u32 s{sPROB}, 0"); e("    s_waitcnt lgkmcnt(0)")
for b, x, y in ((SX, 4, 14), (SQ, 10, 20), (SV, 8, 18), (SK, 6, 16), (SO, 12, 22)):
    e(f"    s_cselect_b64 s[{b}:{b+1}], s[{x}:{x+1}], s[{y}:{y+1}]")
vm(f"buffer_load_dwordx4 {r4(vXR)}, v{vD}, {s4(SX)}, s{sT0} offen")
for i in range(D): issue(*seq[i])
stamp(1)
e(f"    s_mov_b64 s[{SW}:{SW+1}], s[28:29]"); e(f"    s_mov_b64 s[{SD}:{SD+1}], s[26:27]"); e(f"    s_mov_b64 s[{SOUT}:{SOUT+1}], s[24:25]")
e(f"    s_lshl_b32 s{sPID}, s{sPROB}, 5"); e(f"    s_add_u32 s{sPID}, s{sPID}, s{sHEAD}")
e(f"    s_lshl_b32 s{sPID}, s{sPID}, 2"); e(f"    s_add_u32 s{sPID}, s{sPID}, s{sSPL}")
e(f"    s_lshl_b32 s{sPID}, s{sPID}, 2"); e(f"    s_add_u32 s{sPID}, s{sPID}, s{sWAVE}")
e(f"    s_lshl_b32 s{sYS}, s{sPID}, 9"); e(f"    s_lshl_b32 s{sPID}, s{sPID}, 4"); e(f"    s_add_u32 s{sPID}, s{sPID}, {WS_ML}")
e(f"    v_add_u32 v{vT2}, s{sYS}, v{vKV}")
for r in range(4): e(f"    v_mov_b32 v{vA[0]+r}, -1")
e(f"    v_writelane_b32 v{vT2}, s{sPID}, 32")
e(f"    s_mov_b32 exec_hi, 1")
vm(f"buffer_store_dwordx4 {r4(vA[0])}, v{vT2}, {s4(SW)}, 0 offen sc1")
e(f"    s_mov_b32 exec_hi, -1")
e(f"    v_and_b32 v{vT2}, 1, v0"); e(f"    v_lshlrev_b32 v{vT2}, 4, v{vT2}"); e(f"    s_mov_b32 s{sT0}, 0xffff")
e(f"    v_lshlrev_b32 v{vT2}, v{vT2}, s{sT0}"); e(f"    v_bfe_u32 v{vD}, v0, 1, 2")
for r in range(4):
    e(f"    v_cmp_eq_u32 vcc, {r}, v{vD}"); e("    s_nop 1"); e(f"    v_cndmask_b32 v{vM+r}, 0, v{vT2}, vcc")
for s, c in ((sDLO, 0x01000100), (sDHI, 0x03020302), (sLO, 0x05040100), (sHI, 0x07060302), (sM1, 0xcccccccc), (sM1+1, 0xcccccccc), (sM0, 0xaaaaaaaa), (sM0+1, 0xaaaaaaaa)):
    e(f"    s_mov_b32 s{s}, {hex(c)}")
e(f"    v_and_b32 v{vT2}, 15, v0"); e(f"    v_lshlrev_b32 v{vYS}, 5, v{vT2}"); e(f"    v_and_b32 v{vD}, 16, v0")
e(f"    v_add_u32 v{vYS}, v{vYS}, v{vD}            ; n*32 + h*16")
e(f"    s_lshl_b32 s{sT0}, s{sWAVE}, 9"); e(f"    v_add_u32 v{vOW}, s{sT0}, v{vYS}")
e(f"    v_lshrrev_b32 v{vOR}, 2, v{vT2}"); e(f"    v_lshlrev_b32 v{vOR}, 7, v{vOR}"); e(f"    v_lshl_add_u32 v{vOR}, v{vT}, 5, v{vOR}")
e(f"    v_and_b32 v{vD}, 3, v0"); e(f"    v_lshl_add_u32 v{vOR}, v{vD}, 3, v{vOR}     ; c*128 + g*32 + r*8")
e(f"    v_lshrrev_b32 v{vD+1}, 2, v0"); e(f"    s_lshl_b32 s{sT0}, s{sPROB}, 2"); e(f"    s_add_u32 s{sT0}, s{sT0}, s{sWAVE}")
e(f"    s_lshl_b32 s{sT0}, s{sT0}, 5"); e(f"    v_add_u32 v{vD+1}, s{sT0}, v{vD+1}")
e(f"    v_lshlrev_b32 v{vD+2}, 4, v{vD}"); e(f"    v_lshl_add_u32 v{vCY}, v{vD+1}, 11, v{vD+2}"); e(f"    v_lshl_add_u32 v{vCM}, v{vD+1}, 6, v{vD+2}")
e(f"    s_lshl_b32 s{sCY}, s{sHEAD}, 6"); e(f"    s_lshl_b32 s{sT0}, s{sWAVE}, 2")
e(f"    v_lshl_add_u32 v{vRW}, v{vD}, 2, v{vT}"); e(f"    v_lshl_add_u32 v{vRW}, v{vRW}, 4, s{sT0}")
e(f"    s_lshl_b32 s{sOO}, s{sPROB}, 10"); e(f"    s_lshl_b32 s{sT1}, s{sHEAD}, 5"); e(f"    s_add_u32 s{sOO}, s{sOO}, s{sT1}")

def row_reduce(op, dst, src):
    e("    s_nop 1"); e(f"    {op}_dpp v{dst}, v{src}, v{src} row_ror:8 {DPP}0xf")
    for n in (4, 2, 1):
        e("    s_nop 1"); e(f"    {op}_dpp v{dst}, v{dst}, v{dst} row_ror:{n} {DPP}0xf")
def xrow_reduce(op, dst, tmp):
    for sw in ("16", "32"):
        e(f"    v_mov_b32 v{tmp}, v{dst}"); e("    s_nop 1")
        e(f"    v_permlane{sw}_swap_b32 v{dst}, v{tmp}"); e(f"    {op} v{dst}, v{dst}, v{tmp}")
nm = 0
def bc_mfma(src, lane, data, first, op=None):
    global nm
    A = vA[nm % 2]; nm += 1
    for r in range(4): e(f"    v_and_b32_dpp v{A+r}, v{src}, v{vM+r} row_newbcast:{lane} {DPP}0xf")
    n0 = len(L)
    if op is not None: wait(op)
    e("    s_nop 0" if len(L) > n0 else "    s_nop 1")
    e(f"    v_mfma_f32_16x16x32_bf16 {r4(vD)}, {r4(A)}, {data}, {'0' if first else r4(vD)}")
def write_partial(off):
    e("    s_mov_b32 exec_hi, 0"); e("    s_nop 6")
    e(f"    ds_write_b128 v{vOW}, {r4(vD)} offset:{off}")
    e("    s_mov_b32 exec_hi, -1"); e("    s_waitcnt lgkmcnt(0)"); e("    s_barrier")

parked = list(range(32)); pv_on = False; pv_first = True
def pv(j):
    global pv_first
    data = f"a[{4*j}:{4*j+3}]" if j < 32 else r4(slot[("v", j)])
    bc_mfma(vP + j // 16, brev(j % 16), data, pv_first, opid[("v", j)]); pv_first = False

def q_stage():
    write_partial(L_QP)
    e(f"    v_and_b32 v{vT}, 15, v0"); e(f"    v_lshlrev_b32 v{vT}, 5, v{vT}")
    X = vXR
    for ww in range(4):
        e(f"    ds_read_b128 {r4(X+8*ww)}, v{vT} offset:{L_QP+512*ww}"); e(f"    ds_read_b128 {r4(X+8*ww+4)}, v{vT} offset:{L_QP+512*ww+16}")
    e(f"    s_cmp_lg_u32 s{sWAVE}, 0"); e("    s_cbranch_scc1 L_noadd")
    e(f"    s_lshl_b32 s{sT0}, s{sPROB}, 7"); e(f"    v_mov_b32 v{vT2}, s{sT0}"); e(f"    v_mov_b32 v{vD}, 1")
    e("    s_mov_b64 exec, 1"); e(f"    buffer_atomic_add v{vD}, v{vT2}, {s4(SD)}, 0 offen sc1"); e("    s_mov_b64 exec, -1")
    e("L_noadd:")
    e("    s_waitcnt lgkmcnt(4)")
    for r in range(0, 8, 2): e(f"    v_pk_add_f32 v[{X+r}:{X+r+1}], v[{X+r}:{X+r+1}], v[{X+8+r}:{X+9+r}]")
    e("    s_waitcnt lgkmcnt(0)")
    for r in range(0, 8, 2): e(f"    v_pk_add_f32 v[{X+16+r}:{X+17+r}], v[{X+16+r}:{X+17+r}], v[{X+24+r}:{X+25+r}]")
    for r in range(0, 8, 2): e(f"    v_pk_add_f32 v[{X+r}:{X+r+1}], v[{X+r}:{X+r+1}], v[{X+16+r}:{X+17+r}]")
    for r in range(4): e(f"    v_cvt_pk_bf16_f32 v{vQ+r}, v{X+2*r}, v{X+2*r+1}")
    stamp(2)

def max_stage():
    global pv_on
    e(f"    v_max3_f32 v{vT2}, v{vP}, v{vP+1}, v{vP+2}"); e(f"    v_max_f32 v{vT2}, v{vT2}, v{vP+3}")
    row_reduce("v_max_f32", vT, vT2); xrow_reduce("v_max_f32", vT, vT2)
    e(f"    s_lshl_b32 s{sT0}, s{sWAVE}, 2"); e(f"    v_mov_b32 v{vT2}, s{sT0}")
    e(f"    ds_write_b32 v{vT2}, v{vT} offset:{L_M}"); e(f"    v_mov_b32 v{vT2}, 0")
    e("    s_waitcnt lgkmcnt(0)"); e("    s_barrier")
    e(f"    ds_read_b128 {r4(32)}, v{vT2} offset:{L_M}")
    e(f"    s_cmp_lg_u32 s{sSPL}, 0"); e("    s_cbranch_scc1 L_nocnt")
    e(f"    s_lshl_b32 s{sT0}, s{sPROB}, 7")
    e(f"    buffer_load_dword v{vCNT}, v{vT2}, {s4(SD)}, s{sT0} offen sc1")
    e("L_nocnt:")
    e("    s_waitcnt lgkmcnt(0)")
    e(f"    v_max3_f32 v{vMX}, v32, v33, v34"); e(f"    v_max_f32 v{vMX}, v{vMX}, v35")
    for g in range(4): e(f"    v_sub_f32 v{vP+g}, v{vP+g}, v{vMX}")
    for g in range(4): e(f"    v_mul_f32 v{vP+g}, 0x3fb8aa3b, v{vP+g}")
    for g in range(4): e(f"    v_exp_f32 v{vP+g}, v{vP+g}")
    e("    s_nop 0")
    e(f"    v_add_f32 v32, v{vP}, v{vP+1}"); e(f"    v_add_f32 v33, v{vP+2}, v{vP+3}"); e(f"    v_add_f32 v32, v32, v33")
    for g in range(4): e(f"    v_cvt_pk_bf16_f32 v{vP+g}, v{vP+g}, v{vP+g}")
    row_reduce("v_add_f32", 33, 32); xrow_reduce("v_add_f32", 33, 34)
    e(f"    v_min_u32 v32, -2, v{vMX}"); e(f"    v_min_u32 v33, -2, v33")
    e("    s_mov_b64 exec, 1")
    vm(f"buffer_store_dwordx2 v[32:33], v{vT2}, {s4(SW)}, s{sPID} offen sc1")
    e("    s_mov_b64 exec, -1")
    stamp(3)
    pv_on = True

def consume(t, j):
    op = opid[(t, j)]
    if t == "q":
        if j == 0:
            wait(0)
            for r in range(8): e(f"    v_perm_b32 v{vXD+r}, v{vXR+r//2}, v{vXR+r//2}, s{sDHI if r % 2 else sDLO}")
            e("    s_nop 1")
        bc_mfma(vXD + j % 8, j // 8, r4(slot[(t, j)]), j == 0, op); release(t, j)
        if j == 31: q_stage()
    elif t == "o":
        wait(op)
        if j % 2:
            a, b = slot[(t, j-1)], slot[(t, j)]
            for el in range(8):
                e(f"    v_perm_b32 v{vB + 32*(j//8) + 4*el + (j%8)//2}, v{b+el//2}, v{a+el//2}, s{sHI if el % 2 else sLO}")
            release(t, j-1); release(t, j)
    elif t == "k":
        wait(op); kb = slot[(t, j)]; s = S[j % 2]
        e(f"    v_dot2_f32_bf16 v{s}, v{kb}, v{vQ}, 0")
        for r in range(1, 4): e(f"    v_dot2_f32_bf16 v{s}, v{kb+r}, v{vQ+r}, v{s}")
        release(t, j)
        if j % 2 == 1:
            tt = T[(j//2) % 2]
            e(f"    v_add_f32_dpp v{tt}, v{S[0]}, v{S[0]} row_ror:8 {DPP}0x3"); e("    s_nop 1")
            e(f"    v_add_f32_dpp v{tt}, v{S[1]}, v{S[1]} row_ror:8 {DPP}0xc")
        if j % 4 == 3:
            u = U[(j//4) % 2]
            e(f"    v_add_f32_dpp v{u}, v{T[0]}, v{T[0]} row_half_mirror {DPP}0x5"); e("    s_nop 0")
            e(f"    v_add_f32_dpp v{u}, v{T[1]}, v{T[1]} row_half_mirror {DPP}0xa")
        if j % 8 == 7:
            e(f"    v_add_f32_dpp v{vT}, v{U[0]}, v{U[0]} quad_perm:[2,3,0,1] {DPP}0xf"); e("    s_nop 0")
            e(f"    v_add_f32_dpp v{vT2}, v{U[1]}, v{U[1]} quad_perm:[2,3,0,1] {DPP}0xf")
            e(f"    v_cndmask_b32 v{Wd[(j//8) % 2]}, v{vT}, v{vT2}, s[{sM1}:{sM1+1}]")
        if j % 16 == 15:
            p = vP + j // 16
            e(f"    v_add_f32_dpp v{vT}, v{Wd[0]}, v{Wd[0]} quad_perm:[1,0,3,2] {DPP}0xf"); e("    s_nop 0")
            e(f"    v_add_f32_dpp v{vT2}, v{Wd[1]}, v{Wd[1]} quad_perm:[1,0,3,2] {DPP}0xf")
            e(f"    v_cndmask_b32 v{p}, v{vT}, v{vT2}, s[{sM0}:{sM0+1}]")
            e(f"    v_cvt_pk_bf16_f32 v{p}, v{p}, v{p}"); e(f"    v_and_b32 v{p}, 0xffff0000, v{p}")
            e(f"    v_mul_f32 v{p}, 0x3db504f3, v{p}")
            e(f"    v_cvt_pk_bf16_f32 v{p}, v{p}, v{p}"); e(f"    v_and_b32 v{p}, 0xffff0000, v{p}")
        if j == 63: max_stage()
    else:
        if j < 32: wait(op)
        else:
            pv(j); release(t, j)
def ml_loads():
    for t in range(2): e(f"    buffer_load_dwordx2 v[{vML+2*t}:{vML+2*t+1}], v{vCM}, {s4(SW)}, s{sT1} offen offset:{1024*t} sc1")

N = len(seq); cnt_op = None
for i in range(D, N + D):
    was = pv_on
    consume(*seq[i-D])
    if pv_on and not was: cnt_op = nissued - 1
    if i < N: issue(*seq[i])
    if pv_on and was:
        for _ in range(2):
            if parked: pv(parked.pop(0))
    if cnt_op is not None and (done >= cnt_op and i >= N - 1 - MLB):
        cnt_op = None
        e(f"    s_cmp_lg_u32 s{sSPL}, 0"); e("    s_cbranch_scc1 L_noml")
        e("L_cnt:"); e(f"    v_readfirstlane_b32 s{sT0}, v{vCNT}"); e(f"    s_cmp_ge_u32 s{sT0}, 128"); e("    s_cbranch_scc1 L_cntok")
        e(f"    s_lshl_b32 s{sT0}, s{sPROB}, 7"); e(f"    v_mov_b32 v{vT2}, 0")
        e(f"    buffer_load_dword v{vCNT}, v{vT2}, {s4(SD)}, s{sT0} offen sc1"); e("    s_waitcnt vmcnt(0)"); e("    s_branch L_cnt")
        e("L_cntok:"); e(f"    s_mov_b32 s{sT1}, {WS_ML}"); ml_loads(); e("L_noml:")
        print("ml loads at step", i, "of", N, file=sys.stderr)
assert not parked and cnt_op is None
write_partial(L_OP)
stamp(4)
X = vR + 32; vY = vR
e(f"    ds_read2st64_b64 {r4(X)}, v{vOR} offset0:{0} offset1:{1}");
e(f"    ds_read2st64_b64 {r4(X+4)}, v{vOR} offset0:{2} offset1:{3}")
e("    s_waitcnt lgkmcnt(1)"); e(f"    v_pk_add_f32 v[{X}:{X+1}], v[{X}:{X+1}], v[{X+2}:{X+3}]")
e("    s_waitcnt lgkmcnt(0)"); e(f"    v_pk_add_f32 v[{X+4}:{X+5}], v[{X+4}:{X+5}], v[{X+6}:{X+7}]")
e(f"    v_pk_add_f32 v[{X}:{X+1}], v[{X}:{X+1}], v[{X+4}:{X+5}]")
e(f"    v_cvt_pk_bf16_f32 v{vT}, v{X}, v{X+1}"); e("    s_nop 1")
AC = X + 8
def amov(c, r): e(f"    v_mov_b32_dpp v{AC+4*c+r}, v{vT} row_newbcast:{4*c+r} {DPP}0xf")
for r in range(4): amov(0, r)
e("    s_nop 1")
for c in range(4):
    for el in range(8):
        e(f"    v_mfma_f32_16x16x32_bf16 {r4(vY+4*el)}, {r4(AC+4*c)}, {r4(vB+32*c+4*el)}, {'0' if c == 0 else r4(vY+4*el)}")
        if c < 3 and el < 4: amov(c+1, el)
e("    s_nop 3")
for r in range(4): e(f"    v_min_u32 v{X+r}, -2, v{vY+4*r}")
e("    s_mov_b32 exec_lo, 0xffff0000")
for r in range(4): e(f"    v_min_u32 v{X+r}, -2, v{vY+16+4*r}")
e("    s_mov_b64 exec, 0xffffffff" if 0 else "    s_mov_b32 exec_lo, -1"); e("    s_mov_b32 exec_hi, 0")
e(f"    buffer_store_dwordx4 {r4(X)}, v{vYS}, {s4(SW)}, s{sYS} offen sc1")
e("    s_mov_b32 exec_hi, -1")
stamp(5)
def diag_out():
    e(f"    s_cmp_lg_u32 s{sWAVE}, 0"); e("    s_cbranch_scc1 L_nodiag"); e("    s_waitcnt lgkmcnt(0)")
    for i in range(6): e(f"    v_writelane_b32 v{vB}, s{sTS+2*i}, {i}")
    e(f"    s_getreg_b32 s{sT0}, hwreg(HW_REG_XCC_ID)"); e(f"    v_writelane_b32 v{vB}, s{sT0}, 7")
    e(f"    s_lshl_b32 s{sT0}, s2, 6"); e(f"    s_add_u32 s{sT0}, s{sT0}, {WS_DIAG}"); e(f"    v_lshlrev_b32 v{vB+1}, 2, v0")
    e("    s_mov_b64 exec, 0xbf"); e(f"    buffer_store_dword v{vB}, v{vB+1}, {s4(SW)}, s{sT0} offen"); e("    s_mov_b64 exec, -1")
    e("L_nodiag:")
if DIAG: diag_out()
e(f"    s_cmp_lg_u32 s{sSPL}, 0"); e("    s_cbranch_scc1 L_end")
Y = vR + 48; F = vR + 56
e(f"    s_add_u32 s{sT2}, s{sCY}, 32768")
def y_loads():
    e(f"    buffer_load_dwordx4 {r4(Y)}, v{vCY}, {s4(SW)}, s{sCY} offen sc1"); e(f"    buffer_load_dwordx4 {r4(Y+4)}, v{vCY}, {s4(SW)}, s{sT2} offen sc1")
y_loads()
e("L_ml:")
e(f"    v_max3_u32 v{vT}, v{vML}, v{vML+1}, v{vML+2}"); e(f"    v_max_u32 v{vT}, v{vT}, v{vML+3}")
e(f"    v_cmp_eq_u32 vcc, -1, v{vT}"); e("    s_cbranch_vccz L_mlok")
ml_loads(); e("    s_waitcnt vmcnt(0)"); e("    s_branch L_ml")
e("L_mlok:")
for n, first in ((4, 1), (8, 0)):
    for t in range(2): e(f"    v_max_f32_dpp v{F+t}, v{vML+2*t if first else F+t}, v{vML+2*t if first else F+t} row_ror:{n} {DPP}0xf")
    e("    s_nop 0")
for t in range(2): e(f"    v_sub_f32 v{F+t}, v{vML+2*t}, v{F+t}")
for t in range(2): e(f"    v_mul_f32 v{F+t}, 0x3fb8aa3b, v{F+t}")
for t in range(2): e(f"    v_exp_f32 v{F+t}, v{F+t}")
e("    s_nop 0")
for t in range(2): e(f"    v_mul_f32 v{F+2+t}, v{F+t}, v{vML+2*t+1}")
for n in (8, 4, 2, 1):
    e("    s_nop 0")
    for t in range(2): e(f"    v_add_f32_dpp v{F+2+t}, v{F+2+t}, v{F+2+t} row_ror:{n} {DPP}0xf")
for t in range(2): e(f"    v_rcp_f32 v{F+2+t}, v{F+2+t}")
e("    s_nop 0")
for t in range(2): e(f"    v_mul_f32 v{F+t}, v{F+t}, v{F+2+t}")
e("    s_branch L_chk")
e("L_poll:"); y_loads()
e("L_chk:"); e("    s_waitcnt vmcnt(0)")
e(f"    v_max3_u32 v{vT}, v{Y}, v{Y+1}, v{Y+2}"); e(f"    v_max3_u32 v{vT2}, v{Y+3}, v{Y+4}, v{Y+5}")
e(f"    v_max3_u32 v{vT}, v{vT}, v{Y+6}, v{Y+7}"); e(f"    v_max_u32 v{vT}, v{vT}, v{vT2}")
e(f"    v_cmp_eq_u32 vcc, -1, v{vT}"); e("    s_mov_b64 exec, vcc"); e("    s_cbranch_execnz L_poll")
e("    s_mov_b64 exec, -1")
for r in range(4): e(f"    v_mul_f32 v{Y+r}, v{Y+r}, v{F}")
for r in range(4): e(f"    v_fmac_f32 v{Y+r}, v{Y+4+r}, v{F+1}")
e("    s_nop 0")
e(f"    v_permlane16_swap_b32 v{Y}, v{Y+1}"); e(f"    v_permlane16_swap_b32 v{Y+2}, v{Y+3}")
e(f"    v_add_f32 v{Y}, v{Y}, v{Y+1}"); e(f"    v_add_f32 v{Y+2}, v{Y+2}, v{Y+3}"); e("    s_nop 1")
e(f"    v_permlane32_swap_b32 v{Y}, v{Y+2}"); e(f"    v_add_f32 v{Y}, v{Y}, v{Y+2}")
for n in (4, 8):
    e("    s_nop 1"); e(f"    v_add_f32_dpp v{Y}, v{Y}, v{Y} row_ror:{n} {DPP}0xf")
e(f"    ds_write_b32 v{vRW}, v{Y} offset:{L_RED}")
e(f"    v_lshlrev_b32 v{vT}, 1, v0")
e("    s_waitcnt lgkmcnt(0)"); e("    s_barrier")
e(f"    s_cmp_lg_u32 s{sWAVE}, 0"); e("    s_cbranch_scc1 L_end")
e("    s_mov_b64 exec, 0xffff")
e(f"    ds_read_b128 {r4(Y)}, v{vKV} offset:{L_RED}"); e("    s_waitcnt lgkmcnt(0)")
e(f"    v_pk_add_f32 v[{Y}:{Y+1}], v[{Y}:{Y+1}], v[{Y+2}:{Y+3}]"); e(f"    v_add_f32 v{Y}, v{Y}, v{Y+1}")
e(f"    v_cvt_pk_bf16_f32 v{Y}, v{Y}, v{Y}")
e(f"    buffer_store_short v{Y}, v{vT}, {s4(SOUT)}, s{sOO} offen")
if DIAG:
    e(f"    s_memrealtime s[{sTS}:{sTS+1}]"); e("    s_waitcnt lgkmcnt(0)"); e(f"    v_mov_b32 v{vB}, s{sTS}")
    e(f"    s_lshl_b32 s{sT0}, s2, 6"); e(f"    s_add_u32 s{sT0}, s{sT0}, {WS_DIAG+24}"); e(f"    v_mov_b32 v{vB+1}, 0")
    e("    s_mov_b64 exec, 1"); e(f"    buffer_store_dword v{vB}, v{vB+1}, {s4(SW)}, s{sT0} offen")
e("L_end:"); e("    s_endpgm")
e('.section .rodata,"a"'); e(".p2align 6"); e(f".amdhsa_kernel {NAME}_kernel")
e("  .amdhsa_next_free_vgpr 384"); e("  .amdhsa_next_free_sgpr 102"); e("  .amdhsa_accum_offset 256")
e("  .amdhsa_group_segment_fixed_size 0"); e("  .amdhsa_kernarg_size 104"); e("  .amdhsa_user_sgpr_count 2")
e("  .amdhsa_user_sgpr_kernarg_segment_ptr 1"); e("  .amdhsa_system_sgpr_workgroup_id_x 1"); e(".end_amdhsa_kernel")
txt = "\n".join(L) + "\n"
txt = txt.replace(f"; c*128 + g*32 + r*8", f"; c*128 + g*32 + r*8\n    v_add_u32 v{vOR}, {L_OP}, v{vOR}")
open(sys.argv[1], "w").write(txt)
```

```python
import sys
NAME = "concat_heads__gqa_block_cached__gqa_block_cached__decode"
opts = dict(a.split("=") for a in sys.argv[2:])
DIAG = int(opts.get("diag", 0)); D = int(opts.get("d", 16)); ORD = opts.get("o", "j"); ROT = int(opts.get("r", 1))
QW, QB, QG = [(7, 5, 3), (7, 3, 5), (3, 5, 7), (5, 3, 7), (3, 7, 5), (5, 7, 3)][int(opts.get("wqm", 0))]
MLB = int(opts.get("mlb", 4)); NSLOT = int(opts.get("ns", 20))
WQD = int(opts.get("wqd", 0)); AV = int(opts.get("av", 32)); P1 = opts.get("p1", "1:1"); NP = int(opts.get("np", 32))
WT = {"q": float(opts.get("wq", 1)), "o": float(opts.get("wo", 1)), "k": 1.0, "v": 1.0}
D1 = float(opts.get("d1", D)); D3 = float(opts.get("d3", D)); QPOL = opts.get("qp", "nt").replace("_", " "); OPOL = opts.get("op", "nt").replace("_", " ")
L = []
def e(s=""): L.append(s)
def brev(j): return int(f"{j:04b}"[::-1], 2)
def r4(b): return f"v[{b}:{b+3}]"
def s4(b): return f"s[{b}:{b+3}]"
hdr = open("cdna_kernels/%s.s.ref" % NAME).read().split("\n")
for ln in hdr:
    if ln.startswith("; @launch"):
        e("; @launch grid=(256,1,1) block=(256,1,1) lds=4608"); break
    e(ln)
e('.amdgcn_target "amdgcn-amd-amdhsa--gfx950"'); e(".text"); e(f".globl {NAME}_kernel"); e(".p2align 8")
e(f".type {NAME}_kernel,@function"); e(f"{NAME}_kernel:")
SX, SK, SV, SQ, SO, SW, SD, SOUT = 32, 36, 40, 44, 48, 52, 56, 84
sHEAD, sSPL, sPROB, sWAVE, sPID = 60, 61, 62, 63, 64
sT0, sT1, sT2 = 65, 66, 67
sKV, sRK, sRV, sWQ, sWO = 68, 69, 70, 71, 72
sLO, sHI, sDLO, sDHI = 73, 74, 75, 76
sM1, sM0 = 78, 80
sYS, sCY, sOO = 77, 82, 83
sTS = 88
vKV, vWQ, vWO, vT, vT2 = 1, 2, 3, 4, 5
vM, vQ, vA, vD, vP = 6, 10, [14, 18], 22, 26
S = [30, 31]; T = [32, 33]; U = [34, 35]; Wd = [36, 37]
vOW, vOR, vYS, vCY, vCM, vRW, vML = 38, 39, 40, 41, 42, 43, 44
vR = 48; vB = 128
vXR, vXD = (44, 30) if WQD else (vB, vB + 4)
vCNT, vMX = 30, 31
L_QP, L_M, L_OP, L_RED = 0, 2048, 2304, 4352
WS_ML = 512 * 1024; WS_DIAG = 1024 * 1024
DPP = "row_mask:0xf bank_mask:"
def stamp(i):
    if DIAG: e(f"    s_memrealtime s[{sTS+2*i}:{sTS+2*i+1}]")

nissued = 0; done = -1
def vm(txt):
    global nissued
    e("    " + txt); nissued += 1; return nissued - 1
def wait(op):
    global done
    if op > done:
        e(f"    s_waitcnt vmcnt({nissued - 1 - op})"); done = op
free = list(range(NSLOT)); slot = {}; opid = {}

def mix(a, b, ra, rb):
    out = []; a = list(a); b = list(b)
    while a or b:
        out += a[:ra]; a = a[ra:]; out += b[:rb]; b = b[rb:]
    return out
q = [("q", j) for j in range(32)]; k = [("k", j) for j in range(64)]; v = [("v", j) for j in range(64)]; w = [("o", j) for j in range(32)]
ra, rb = map(int, P1.split(":"))
seq = mix(q, v[:NP], ra, rb) if ORD.islower() else mix(v[:NP], q, rb, ra)
NP1 = len(seq)
o_ = ORD.lower()
if o_ == "h": seq += mix(w, k, 1, 1)
elif o_ == "j": seq += mix(k, w, 2, 1)
elif o_ == "k": seq += k[:32] + mix(w, k[32:], 1, 1)
NP2 = len(seq)
seq += v[NP:]

def issue(t, j):
    if t == "v" and j < AV: dst = f"a[{4*j}:{4*j+3}]"
    elif t == "q" and WQD:
        slot[(t, j)] = vB + 4 * j; dst = r4(slot[(t, j)])
    else:
        slot[(t, j)] = vR + 4 * free.pop(0); dst = r4(slot[(t, j)])
    if t == "q":
        opid[(t, j)] = vm(f"buffer_load_dwordx4 {dst}, v{vWQ}, {s4(SQ)}, s{sWQ} offen {QPOL}")
        if j < 31: e(f"    s_add_u32 s{sWQ}, s{sWQ}, {8192 if j % 8 < 7 else ((1 << QB) - 7)*8192}")
    elif t == "o":
        opid[(t, j)] = vm(f"buffer_load_dwordx4 {dst}, v{vWO}, {s4(SO)}, s{sWO} offen offset:{1024*(j%4)} {OPOL}")
        if j % 4 == 3 and j < 31: e(f"    s_add_u32 s{sWO}, s{sWO}, {4096 if j % 8 < 7 else 28*1024}")
    else:
        s = sRK if t == "k" else sRV
        e(f"    s_add_u32 s{sT2}, s{sKV}, s{s}")
        opid[(t, j)] = vm(f"buffer_load_dwordx4 {dst}, v{vKV}, {s4(SK if t == 'k' else SV)}, s{sT2} offen nt")
        if j < 63:
            e(f"    s_add_u32 s{s}, s{s}, 1024"); e(f"    s_and_b32 s{s}, s{s}, 0xfc00")
def release(t, j):
    if (t == "q" and WQD) or (t == "v" and j < AV): return
    free.append((slot[(t, j)] - vR) // 4)
ni = 0; nc = 0
IF = int(opts.get("if", 0)); BQ = int(opts.get("bq", 0)); BM = int(opts.get("bm", 0)); boost = 0
def fill():
    global ni
    while ni < len(seq):
        t, j = seq[ni]
        W = D1 if ni < NP1 else (D if ni < NP2 else D3)
        if sum(WT[x[0]] for x in seq[nc:ni+1]) > W + boost + 1e-6 or ni - nc >= 56: break
        if not ((t == "q" and WQD) or (t == "v" and j < AV)) and not free: break
        issue(t, j); ni += 1

stamp(0)
e("    s_cmp_ge_u32 s2, 256"); e("    s_cbranch_scc1 L_end")
e("    s_load_dwordx16 s[4:19], s[0:1], 0"); e("    s_load_dwordx8 s[20:27], s[0:1], 64"); e("    s_load_dwordx2 s[28:29], s[0:1], 96")
e("    v_lshrrev_b32 v4, 6, v0"); e("    v_and_b32 v0, 63, v0                  ; lane")
e(f"    v_readfirstlane_b32 s{sWAVE}, v4")
e(f"    s_lshr_b32 s{sT0}, s2, 5"); e(f"    s_and_b32 s{sT1}, s2, 7"); e(f"    s_lshr_b32 s{sPROB}, s2, 7")
HM = int(opts.get("hm", 0))
if HM == 1:
    e(f"    s_add_u32 s{sT1}, s{sT1}, s{sT0}"); e(f"    s_and_b32 s{sT1}, s{sT1}, 7")
if HM >= 4:
    pm = {4: "51734062", 5: "15734062", 6: "51023467", 7: "57130462"}[HM]
    e(f"    s_lshl_b32 s{sT1}, s{sT1}, 2"); e(f"    s_lshr_b32 s{sT1}, 0x{pm[::-1]}, s{sT1}"); e(f"    s_and_b32 s{sT1}, s{sT1}, 7")
if HM == 2:
    e(f"    s_and_b32 s{sT0}, s{sT0}, 3"); e(f"    s_lshl_b32 s{sT1}, s{sT1}, 2")
elif HM == 3:
    e(f"    s_mul_i32 s{sT2}, s{sT0}, 3"); e(f"    s_add_u32 s{sT1}, s{sT1}, s{sT2}"); e(f"    s_and_b32 s{sT1}, s{sT1}, 7")
if HM != 2:
    e(f"    s_and_b32 s{sT0}, s{sT0}, 3"); e(f"    s_lshl_b32 s{sT0}, s{sT0}, 3")
e(f"    s_or_b32 s{sHEAD}, s{sT0}, s{sT1}          ; head 0..31")
e(f"    s_bfe_u32 s{sSPL}, s2, 0x20003            ; split 0..3")
e(f"    v_lshlrev_b32 v{vKV}, 4, v0              ; lane*16")
e(f"    v_lshrrev_b32 v{vT}, 4, v0               ; g")
e(f"    v_and_b32 v{vT2}, 15, v0                 ; i")
e(f"    v_lshlrev_b32 v{vT2}, 4, v{vT2}")
e(f"    v_lshl_add_u32 v{vWQ}, v{vT}, {13+QG}, v{vT2}")
e(f"    v_lshl_add_u32 v{vWO}, v{vT}, 13, v{vT2}     ; g*8*1024 + i*16")
e(f"    v_and_b32 v{vD}, 3, v0"); e(f"    v_lshlrev_b32 v{vD}, {QB+1}, v{vD}")
e(f"    v_lshl_add_u32 v{vD}, v{vT}, {QG+1}, v{vD}")
e(f"    s_lshl_b32 s{sT0}, s{sWAVE}, {QW+1}             ; x soffset")
e(f"    s_lshl_b32 s{sWQ}, s{sWAVE}, {13+QW}"); e(f"    s_lshl_b32 s{sT1}, s{sHEAD}, 8"); e(f"    s_add_u32 s{sWQ}, s{sWQ}, s{sT1}")
e(f"    s_lshl_b32 s{sKV}, s{sHEAD}, 20"); e(f"    s_lshl_b32 s{sT1}, s{sSPL}, 18"); e(f"    s_add_u32 s{sKV}, s{sKV}, s{sT1}")
e(f"    s_lshl_b32 s{sT1}, s{sWAVE}, 16"); e(f"    s_add_u32 s{sKV}, s{sKV}, s{sT1}")
a_, b_, c_ = {1: (3, 4, 0), 4: (3, 4, 1), 7: (5, 20, 0), 2: (1, 4, 0), 3: (3, 5, 0)}[ROT]
e(f"    s_lshl_b32 s{sRK}, s{sPROB}, {a_}"); e(f"    s_add_u32 s{sRK}, s{sRK}, s{sHEAD}")
e(f"    s_mul_i32 s{sT1}, s{sWAVE}, {b_}"); e(f"    s_add_u32 s{sRK}, s{sRK}, s{sT1}")
if c_: e(f"    s_add_u32 s{sRK}, s{sRK}, s{sSPL}")
e(f"    s_and_b32 s{sRK}, s{sRK}, 63"); e(f"    s_lshl_b32 s{sRK}, s{sRK}, 10"); e(f"    s_mov_b32 s{sRV}, s{sRK}")
e(f"    s_lshl_b32 s{sWO}, s{sHEAD}, 17"); e(f"    s_lshl_b32 s{sT1}, s{sWAVE}, 8"); e(f"    s_add_u32 s{sWO}, s{sWO}, s{sT1}")
for b, n in ((SX, 1024), (SQ, 0x400000), (SK, 0x2000000), (SV, 0x2000000), (SO, 0x400000), (SW, 0x200000), (SD, 256), (SOUT, 2048)):
    e(f"    s_mov_b32 s{b+2}, {n}"); e(f"    s_mov_b32 s{b+3}, 0x20000")
e(f"    s_cmp_eq_u32 s{sPROB}, 0"); e("    s_waitcnt lgkmcnt(0)")
for b, x, y in ((SX, 4, 14), (SQ, 10, 20), (SV, 8, 18), (SK, 6, 16), (SO, 12, 22)):
    e(f"    s_cselect_b64 s[{b}:{b+1}], s[{x}:{x+1}], s[{y}:{y+1}]")
vm(f"buffer_load_dwordx4 {r4(vXR)}, v{vD}, {s4(SX)}, s{sT0} offen")
fill()
stamp(1)
e(f"    s_mov_b64 s[{SW}:{SW+1}], s[28:29]"); e(f"    s_mov_b64 s[{SD}:{SD+1}], s[26:27]"); e(f"    s_mov_b64 s[{SOUT}:{SOUT+1}], s[24:25]")
e(f"    s_lshl_b32 s{sPID}, s{sPROB}, 5"); e(f"    s_add_u32 s{sPID}, s{sPID}, s{sHEAD}")
e(f"    s_lshl_b32 s{sPID}, s{sPID}, 2"); e(f"    s_add_u32 s{sPID}, s{sPID}, s{sSPL}")
e(f"    s_lshl_b32 s{sPID}, s{sPID}, 2"); e(f"    s_add_u32 s{sPID}, s{sPID}, s{sWAVE}")
e(f"    s_lshl_b32 s{sYS}, s{sPID}, 9"); e(f"    s_lshl_b32 s{sPID}, s{sPID}, 4"); e(f"    s_add_u32 s{sPID}, s{sPID}, {WS_ML}")
e(f"    v_add_u32 v{vT2}, s{sYS}, v{vKV}")
for r in range(4): e(f"    v_mov_b32 v{vA[0]+r}, -1")
e(f"    v_writelane_b32 v{vT2}, s{sPID}, 32")
e(f"    s_mov_b32 exec_hi, 1")
vm(f"buffer_store_dwordx4 {r4(vA[0])}, v{vT2}, {s4(SW)}, 0 offen sc1")
e(f"    s_mov_b32 exec_hi, -1")
e(f"    v_and_b32 v{vT2}, 1, v0"); e(f"    v_lshlrev_b32 v{vT2}, 4, v{vT2}"); e(f"    s_mov_b32 s{sT0}, 0xffff")
e(f"    v_lshlrev_b32 v{vT2}, v{vT2}, s{sT0}"); e(f"    v_bfe_u32 v{vD}, v0, 1, 2")
for r in range(4):
    e(f"    v_cmp_eq_u32 vcc, {r}, v{vD}"); e("    s_nop 1"); e(f"    v_cndmask_b32 v{vM+r}, 0, v{vT2}, vcc")
for s, c in ((sDLO, 0x01000100), (sDHI, 0x03020302), (sLO, 0x05040100), (sHI, 0x07060302), (sM1, 0xcccccccc), (sM1+1, 0xcccccccc), (sM0, 0xaaaaaaaa), (sM0+1, 0xaaaaaaaa)):
    e(f"    s_mov_b32 s{s}, {hex(c)}")
e(f"    v_and_b32 v{vT2}, 15, v0"); e(f"    v_lshlrev_b32 v{vYS}, 5, v{vT2}"); e(f"    v_and_b32 v{vD}, 16, v0")
e(f"    v_add_u32 v{vYS}, v{vYS}, v{vD}            ; n*32 + h*16")
e(f"    s_lshl_b32 s{sT0}, s{sWAVE}, 9"); e(f"    v_add_u32 v{vOW}, s{sT0}, v{vYS}")
e(f"    v_lshrrev_b32 v{vOR}, 2, v{vT2}"); e(f"    v_lshlrev_b32 v{vOR}, 7, v{vOR}"); e(f"    v_lshl_add_u32 v{vOR}, v{vT}, 5, v{vOR}")
e(f"    v_and_b32 v{vD}, 3, v0"); e(f"    v_lshl_add_u32 v{vOR}, v{vD}, 3, v{vOR}     ; c*128 + g*32 + r*8")
e(f"    v_lshrrev_b32 v{vD+1}, 2, v0"); e(f"    s_lshl_b32 s{sT0}, s{sPROB}, 2"); e(f"    s_add_u32 s{sT0}, s{sT0}, s{sWAVE}")
e(f"    s_lshl_b32 s{sT0}, s{sT0}, 5"); e(f"    v_add_u32 v{vD+1}, s{sT0}, v{vD+1}")
e(f"    v_lshlrev_b32 v{vD+2}, 4, v{vD}"); e(f"    v_lshl_add_u32 v{vCY}, v{vD+1}, 11, v{vD+2}"); e(f"    v_lshl_add_u32 v{vCM}, v{vD+1}, 6, v{vD+2}")
e(f"    s_lshl_b32 s{sCY}, s{sHEAD}, 6"); e(f"    s_lshl_b32 s{sT0}, s{sWAVE}, 2")
e(f"    v_lshl_add_u32 v{vRW}, v{vD}, 2, v{vT}"); e(f"    v_lshl_add_u32 v{vRW}, v{vRW}, 4, s{sT0}")
e(f"    s_lshl_b32 s{sOO}, s{sPROB}, 10"); e(f"    s_lshl_b32 s{sT1}, s{sHEAD}, 5"); e(f"    s_add_u32 s{sOO}, s{sOO}, s{sT1}")

def row_reduce(op, dst, src):
    e("    s_nop 1"); e(f"    {op}_dpp v{dst}, v{src}, v{src} row_ror:8 {DPP}0xf")
    for n in (4, 2, 1):
        e("    s_nop 1"); e(f"    {op}_dpp v{dst}, v{dst}, v{dst} row_ror:{n} {DPP}0xf")
def xrow_reduce(op, dst, tmp):
    for sw in ("16", "32"):
        e(f"    v_mov_b32 v{tmp}, v{dst}"); e("    s_nop 1")
        e(f"    v_permlane{sw}_swap_b32 v{dst}, v{tmp}"); e(f"    {op} v{dst}, v{dst}, v{tmp}")
nm = 0
def bc_mfma(src, lane, data, first, op=None, hook=True):
    global nm
    A = vA[nm % 2]; nm += 1
    for r in range(4): e(f"    v_and_b32_dpp v{A+r}, v{src}, v{vM+r} row_newbcast:{lane} {DPP}0xf")
    n0 = len(L)
    if op is not None: wait(op)
    if IF and hook: fill()
    if len(L) < n0 + 2: e("    s_nop 0" if len(L) > n0 else "    s_nop 1")
    e(f"    v_mfma_f32_16x16x32_bf16 {r4(vD)}, {r4(A)}, {data}, {'0' if first else r4(vD)}")
def write_partial(off):
    e("    s_mov_b32 exec_hi, 0"); e("    s_nop 6")
    e(f"    ds_write_b128 v{vOW}, {r4(vD)} offset:{off}")
    e("    s_mov_b32 exec_hi, -1"); e("    s_waitcnt lgkmcnt(0)"); e("    s_barrier")

parked = list(range(NP)); pv_on = False; pv_first = True
def pv(j):
    global pv_first
    data = f"a[{4*j}:{4*j+3}]" if j < AV else r4(slot[("v", j)])
    bc_mfma(vP + j // 16, brev(j % 16), data, pv_first, opid[("v", j)], j >= NP); pv_first = False

def q_stage():
    write_partial(L_QP)
    e(f"    v_and_b32 v{vT}, 15, v0"); e(f"    v_lshlrev_b32 v{vT}, 5, v{vT}")
    X = vB
    for ww in range(4):
        e(f"    ds_read_b128 {r4(X+8*ww)}, v{vT} offset:{L_QP+512*ww}"); e(f"    ds_read_b128 {r4(X+8*ww+4)}, v{vT} offset:{L_QP+512*ww+16}")
    e(f"    s_cmp_lg_u32 s{sWAVE}, 0"); e("    s_cbranch_scc1 L_noadd")
    e(f"    s_lshl_b32 s{sT0}, s{sPROB}, 7"); e(f"    v_mov_b32 v{vT2}, s{sT0}"); e(f"    v_mov_b32 v{vD}, 1")
    e("    s_mov_b64 exec, 1"); e(f"    buffer_atomic_add v{vD}, v{vT2}, {s4(SD)}, 0 offen sc1"); e("    s_mov_b64 exec, -1")
    e("L_noadd:")
    e("    s_waitcnt lgkmcnt(4)")
    for r in range(0, 8, 2): e(f"    v_pk_add_f32 v[{X+r}:{X+r+1}], v[{X+r}:{X+r+1}], v[{X+8+r}:{X+9+r}]")
    e("    s_waitcnt lgkmcnt(0)")
    for r in range(0, 8, 2): e(f"    v_pk_add_f32 v[{X+16+r}:{X+17+r}], v[{X+16+r}:{X+17+r}], v[{X+24+r}:{X+25+r}]")
    for r in range(0, 8, 2): e(f"    v_pk_add_f32 v[{X+r}:{X+r+1}], v[{X+r}:{X+r+1}], v[{X+16+r}:{X+17+r}]")
    for r in range(4): e(f"    v_cvt_pk_bf16_f32 v{vQ+r}, v{X+2*r}, v{X+2*r+1}")
    stamp(2)

def max_stage():
    global pv_on
    e(f"    v_max3_f32 v{vT2}, v{vP}, v{vP+1}, v{vP+2}"); e(f"    v_max_f32 v{vT2}, v{vT2}, v{vP+3}")
    row_reduce("v_max_f32", vT, vT2); xrow_reduce("v_max_f32", vT, vT2)
    e(f"    s_lshl_b32 s{sT0}, s{sWAVE}, 2"); e(f"    v_mov_b32 v{vT2}, s{sT0}")
    e(f"    ds_write_b32 v{vT2}, v{vT} offset:{L_M}"); e(f"    v_mov_b32 v{vT2}, 0")
    e("    s_waitcnt lgkmcnt(0)"); e("    s_barrier")
    e(f"    ds_read_b128 {r4(32)}, v{vT2} offset:{L_M}")
    e(f"    s_cmp_lg_u32 s{sSPL}, 0"); e("    s_cbranch_scc1 L_nocnt")
    e(f"    s_lshl_b32 s{sT0}, s{sPROB}, 7")
    e(f"    buffer_load_dword v{vCNT}, v{vT2}, {s4(SD)}, s{sT0} offen sc1")
    e("L_nocnt:")
    e("    s_waitcnt lgkmcnt(0)")
    e(f"    v_max3_f32 v{vMX}, v32, v33, v34"); e(f"    v_max_f32 v{vMX}, v{vMX}, v35")
    for g in range(4): e(f"    v_sub_f32 v{vP+g}, v{vP+g}, v{vMX}")
    for g in range(4): e(f"    v_mul_f32 v{vP+g}, 0x3fb8aa3b, v{vP+g}")
    for g in range(4): e(f"    v_exp_f32 v{vP+g}, v{vP+g}")
    e("    s_nop 0")
    e(f"    v_add_f32 v32, v{vP}, v{vP+1}"); e(f"    v_add_f32 v33, v{vP+2}, v{vP+3}"); e(f"    v_add_f32 v32, v32, v33")
    for g in range(4): e(f"    v_cvt_pk_bf16_f32 v{vP+g}, v{vP+g}, v{vP+g}")
    row_reduce("v_add_f32", 33, 32); xrow_reduce("v_add_f32", 33, 34)
    e(f"    v_min_u32 v32, -2, v{vMX}"); e(f"    v_min_u32 v33, -2, v33")
    e("    s_mov_b64 exec, 1")
    vm(f"buffer_store_dwordx2 v[32:33], v{vT2}, {s4(SW)}, s{sPID} offen sc1")
    e("    s_mov_b64 exec, -1")
    stamp(3)
    pv_on = True

def consume(t, j):
    op = opid[(t, j)]
    if t == "q":
        if j == 0:
            wait(0)
            for r in range(8): e(f"    v_perm_b32 v{vXD+r}, v{vXR+r//2}, v{vXR+r//2}, s{sDHI if r % 2 else sDLO}")
            e("    s_nop 1")
        bc_mfma(vXD + j % 8, j // 8, r4(slot[(t, j)]), j == 0, op); release(t, j)
        if j == 31: q_stage()
    elif t == "o":
        wait(op)
        if IF: fill()
        if j % 2:
            a, b = slot[(t, j-1)], slot[(t, j)]
            for el in range(8):
                e(f"    v_perm_b32 v{vB + 32*(j//8) + 4*el + (j%8)//2}, v{b+el//2}, v{a+el//2}, s{sHI if el % 2 else sLO}")
            release(t, j-1); release(t, j)
    elif t == "k":
        wait(op); kb = slot[(t, j)]; s = S[j % 2]
        if IF: fill()
        e(f"    v_dot2_f32_bf16 v{s}, v{kb}, v{vQ}, 0")
        for r in range(1, 4): e(f"    v_dot2_f32_bf16 v{s}, v{kb+r}, v{vQ+r}, v{s}")
        release(t, j)
        if j % 2 == 1:
            tt = T[(j//2) % 2]
            e(f"    v_add_f32_dpp v{tt}, v{S[0]}, v{S[0]} row_ror:8 {DPP}0x3"); e("    s_nop 1")
            e(f"    v_add_f32_dpp v{tt}, v{S[1]}, v{S[1]} row_ror:8 {DPP}0xc")
        if j % 4 == 3:
            u = U[(j//4) % 2]
            e(f"    v_add_f32_dpp v{u}, v{T[0]}, v{T[0]} row_half_mirror {DPP}0x5"); e("    s_nop 0")
            e(f"    v_add_f32_dpp v{u}, v{T[1]}, v{T[1]} row_half_mirror {DPP}0xa")
        if j % 8 == 7:
            e(f"    v_add_f32_dpp v{vT}, v{U[0]}, v{U[0]} quad_perm:[2,3,0,1] {DPP}0xf"); e("    s_nop 0")
            e(f"    v_add_f32_dpp v{vT2}, v{U[1]}, v{U[1]} quad_perm:[2,3,0,1] {DPP}0xf")
            e(f"    v_cndmask_b32 v{Wd[(j//8) % 2]}, v{vT}, v{vT2}, s[{sM1}:{sM1+1}]")
        if j % 16 == 15:
            p = vP + j // 16
            e(f"    v_add_f32_dpp v{vT}, v{Wd[0]}, v{Wd[0]} quad_perm:[1,0,3,2] {DPP}0xf"); e("    s_nop 0")
            e(f"    v_add_f32_dpp v{vT2}, v{Wd[1]}, v{Wd[1]} quad_perm:[1,0,3,2] {DPP}0xf")
            e(f"    v_cndmask_b32 v{p}, v{vT}, v{vT2}, s[{sM0}:{sM0+1}]")
            e(f"    v_cvt_pk_bf16_f32 v{p}, v{p}, v{p}"); e(f"    v_and_b32 v{p}, 0xffff0000, v{p}")
            e(f"    v_mul_f32 v{p}, 0x3db504f3, v{p}")
            e(f"    v_cvt_pk_bf16_f32 v{p}, v{p}, v{p}"); e(f"    v_and_b32 v{p}, 0xffff0000, v{p}")
        if j == 63: max_stage()
    else:
        if j < NP: wait(op)
        else:
            pv(j); release(t, j)
def ml_loads():
    for t in range(2): e(f"    buffer_load_dwordx2 v[{vML+2*t}:{vML+2*t+1}], v{vCM}, {s4(SW)}, s{sT1} offen offset:{1024*t} sc1")

N = len(seq); cnt_op = None
while nc < N:
    was = pv_on
    nc += 1
    boost = BQ if seq[nc-1] == ("q", 31) else (BM if seq[nc-1] == ("k", 63) else 0)
    consume(*seq[nc-1])
    boost = 0
    if pv_on and not was: cnt_op = nissued - 1
    fill()
    if pv_on and was:
        for _ in range(int(opts.get("pk", 2))):
            if parked: pv(parked.pop(0))
    if cnt_op is not None and (done >= cnt_op and ni >= N - MLB):
        cnt_op = None
        assert nc < N and done < nissued - 1, "ml loads must precede the final vmcnt(0)"
        e(f"    s_cmp_lg_u32 s{sSPL}, 0"); e("    s_cbranch_scc1 L_noml")
        e("L_cnt:"); e(f"    v_readfirstlane_b32 s{sT0}, v{vCNT}"); e(f"    s_cmp_ge_u32 s{sT0}, 128"); e("    s_cbranch_scc1 L_cntok")
        e(f"    s_lshl_b32 s{sT0}, s{sPROB}, 7"); e(f"    v_mov_b32 v{vT2}, 0")
        e(f"    buffer_load_dword v{vCNT}, v{vT2}, {s4(SD)}, s{sT0} offen sc1"); e("    s_waitcnt vmcnt(0)"); e("    s_branch L_cnt")
        e("L_cntok:"); e(f"    s_mov_b32 s{sT1}, {WS_ML}"); ml_loads(); e("L_noml:")
        print("ml loads at consume", nc, "issue", ni, "of", N, file=sys.stderr)
assert not parked and cnt_op is None
write_partial(L_OP)
stamp(4)
X = vR + 32; vY = vR
e(f"    ds_read2st64_b64 {r4(X)}, v{vOR} offset0:{0} offset1:{1}");
e(f"    ds_read2st64_b64 {r4(X+4)}, v{vOR} offset0:{2} offset1:{3}")
e("    s_waitcnt lgkmcnt(1)"); e(f"    v_pk_add_f32 v[{X}:{X+1}], v[{X}:{X+1}], v[{X+2}:{X+3}]")
e("    s_waitcnt lgkmcnt(0)"); e(f"    v_pk_add_f32 v[{X+4}:{X+5}], v[{X+4}:{X+5}], v[{X+6}:{X+7}]")
e(f"    v_pk_add_f32 v[{X}:{X+1}], v[{X}:{X+1}], v[{X+4}:{X+5}]")
e(f"    v_cvt_pk_bf16_f32 v{vT}, v{X}, v{X+1}"); e("    s_nop 1")
AC = X + 8
def amov(c, r): e(f"    v_mov_b32_dpp v{AC+4*c+r}, v{vT} row_newbcast:{4*c+r} {DPP}0xf")
for r in range(4): amov(0, r)
e("    s_nop 1")
for c in range(4):
    for el in range(8):
        e(f"    v_mfma_f32_16x16x32_bf16 {r4(vY+4*el)}, {r4(AC+4*c)}, {r4(vB+32*c+4*el)}, {'0' if c == 0 else r4(vY+4*el)}")
        if c < 3 and el < 4: amov(c+1, el)
e("    s_nop 3")
for r in range(4): e(f"    v_min_u32 v{X+r}, -2, v{vY+4*r}")
e("    s_mov_b32 exec_lo, 0xffff0000")
for r in range(4): e(f"    v_min_u32 v{X+r}, -2, v{vY+16+4*r}")
e("    s_mov_b64 exec, 0xffffffff" if 0 else "    s_mov_b32 exec_lo, -1"); e("    s_mov_b32 exec_hi, 0")
e(f"    buffer_store_dwordx4 {r4(X)}, v{vYS}, {s4(SW)}, s{sYS} offen sc1")
e("    s_mov_b32 exec_hi, -1")
stamp(5)
def diag_out():
    e(f"    s_cmp_lg_u32 s{sWAVE}, 0"); e("    s_cbranch_scc1 L_nodiag"); e("    s_waitcnt lgkmcnt(0)")
    for i in range(6): e(f"    v_writelane_b32 v{vB}, s{sTS+2*i}, {i}")
    e(f"    s_getreg_b32 s{sT0}, hwreg(HW_REG_XCC_ID)"); e(f"    v_writelane_b32 v{vB}, s{sT0}, 7")
    e(f"    s_lshl_b32 s{sT0}, s2, 6"); e(f"    s_add_u32 s{sT0}, s{sT0}, {WS_DIAG}"); e(f"    v_lshlrev_b32 v{vB+1}, 2, v0")
    e("    s_mov_b64 exec, 0xbf"); e(f"    buffer_store_dword v{vB}, v{vB+1}, {s4(SW)}, s{sT0} offen"); e("    s_mov_b64 exec, -1")
    e("L_nodiag:")
if DIAG: diag_out()
e(f"    s_cmp_lg_u32 s{sSPL}, 0"); e("    s_cbranch_scc1 L_end")
Y = vR + 48; F = vR + 56
e(f"    s_add_u32 s{sT2}, s{sCY}, 32768")
def y_loads():
    e(f"    buffer_load_dwordx4 {r4(Y)}, v{vCY}, {s4(SW)}, s{sCY} offen sc1"); e(f"    buffer_load_dwordx4 {r4(Y+4)}, v{vCY}, {s4(SW)}, s{sT2} offen sc1")
y_loads()
e("L_ml:")
e(f"    v_max3_u32 v{vT}, v{vML}, v{vML+1}, v{vML+2}"); e(f"    v_max_u32 v{vT}, v{vT}, v{vML+3}")
e(f"    v_cmp_eq_u32 vcc, -1, v{vT}"); e("    s_cbranch_vccz L_mlok")
ml_loads(); e("    s_waitcnt vmcnt(0)"); e("    s_branch L_ml")
e("L_mlok:")
for n, first in ((4, 1), (8, 0)):
    for t in range(2): e(f"    v_max_f32_dpp v{F+t}, v{vML+2*t if first else F+t}, v{vML+2*t if first else F+t} row_ror:{n} {DPP}0xf")
    e("    s_nop 0")
for t in range(2): e(f"    v_sub_f32 v{F+t}, v{vML+2*t}, v{F+t}")
for t in range(2): e(f"    v_mul_f32 v{F+t}, 0x3fb8aa3b, v{F+t}")
for t in range(2): e(f"    v_exp_f32 v{F+t}, v{F+t}")
e("    s_nop 0")
for t in range(2): e(f"    v_mul_f32 v{F+2+t}, v{F+t}, v{vML+2*t+1}")
for n in (8, 4, 2, 1):
    e("    s_nop 0")
    for t in range(2): e(f"    v_add_f32_dpp v{F+2+t}, v{F+2+t}, v{F+2+t} row_ror:{n} {DPP}0xf")
for t in range(2): e(f"    v_rcp_f32 v{F+2+t}, v{F+2+t}")
e("    s_nop 0")
for t in range(2): e(f"    v_mul_f32 v{F+t}, v{F+t}, v{F+2+t}")
e("    s_branch L_chk")
e("L_poll:"); y_loads()
e("L_chk:"); e("    s_waitcnt vmcnt(0)")
e(f"    v_max3_u32 v{vT}, v{Y}, v{Y+1}, v{Y+2}"); e(f"    v_max3_u32 v{vT2}, v{Y+3}, v{Y+4}, v{Y+5}")
e(f"    v_max3_u32 v{vT}, v{vT}, v{Y+6}, v{Y+7}"); e(f"    v_max_u32 v{vT}, v{vT}, v{vT2}")
PN = int(opts.get("pn", 0)); PTH = int(opts.get("pth", 8))
if not PN:
    e(f"    v_cmp_eq_u32 vcc, -1, v{vT}"); e("    s_mov_b64 exec, vcc"); e("    s_cbranch_execnz L_poll")
else:
    e(f"    v_cmp_eq_u32 vcc, -1, v{vT}"); e(f"    s_bcnt1_i32_b64 s{sT0}, vcc"); e("    s_cbranch_scc0 L_done")
    e("    s_mov_b64 exec, vcc"); e(f"    s_cmp_gt_u32 s{sT0}, {PTH}"); e("    s_cbranch_scc1 L_poll")
    def pl(b):
        e(f"    buffer_load_dwordx4 {r4(vB+8*b)}, v{vCY}, {s4(SW)}, s{sCY} offen sc1"); e(f"    buffer_load_dwordx4 {r4(vB+8*b+4)}, v{vCY}, {s4(SW)}, s{sT2} offen sc1")
    for b in range(PN): pl(b)
    e("L_fast:")
    for b in range(PN):
        B = vB + 8*b
        e(f"    s_waitcnt vmcnt({2*PN-2})")
        e(f"    v_max3_u32 v{vT}, v{B}, v{B+1}, v{B+2}"); e(f"    v_max3_u32 v{vT2}, v{B+3}, v{B+4}, v{B+5}")
        e(f"    v_max3_u32 v{vT}, v{vT}, v{B+6}, v{B+7}"); e(f"    v_max_u32 v{vT}, v{vT}, v{vT2}")
        e(f"    v_cmp_ne_u32 vcc, -1, v{vT}"); e(f"    s_cbranch_vccz L_skip{b}")
        e(f"    s_andn2_b64 s[{sM1}:{sM1+1}], exec, vcc"); e("    s_mov_b64 exec, vcc")
        for r in range(0, 8, 2): e(f"    v_pk_mov_b32 v[{Y+r}:{Y+r+1}], v[{B+r}:{B+r+1}], v[{B+r}:{B+r+1}] op_sel:[0,1]")
        e(f"    s_mov_b64 exec, s[{sM1}:{sM1+1}]"); e("    s_cbranch_execz L_done")
        e(f"L_skip{b}:"); pl(b)
    e("    s_branch L_fast")
    e("L_done:")
e("    s_mov_b64 exec, -1")
for r in range(4): e(f"    v_mul_f32 v{Y+r}, v{Y+r}, v{F}")
for r in range(4): e(f"    v_fmac_f32 v{Y+r}, v{Y+4+r}, v{F+1}")
e("    s_nop 0")
e(f"    v_permlane16_swap_b32 v{Y}, v{Y+1}"); e(f"    v_permlane16_swap_b32 v{Y+2}, v{Y+3}")
e(f"    v_add_f32 v{Y}, v{Y}, v{Y+1}"); e(f"    v_add_f32 v{Y+2}, v{Y+2}, v{Y+3}"); e("    s_nop 1")
e(f"    v_permlane32_swap_b32 v{Y}, v{Y+2}"); e(f"    v_add_f32 v{Y}, v{Y}, v{Y+2}")
for n in (4, 8):
    e("    s_nop 1"); e(f"    v_add_f32_dpp v{Y}, v{Y}, v{Y} row_ror:{n} {DPP}0xf")
e(f"    ds_write_b32 v{vRW}, v{Y} offset:{L_RED}")
e(f"    v_lshlrev_b32 v{vT}, 1, v0")
e("    s_waitcnt lgkmcnt(0)"); e("    s_barrier")
e(f"    s_cmp_lg_u32 s{sWAVE}, 0"); e("    s_cbranch_scc1 L_end")
e("    s_mov_b64 exec, 0xffff")
e(f"    ds_read_b128 {r4(Y)}, v{vKV} offset:{L_RED}"); e("    s_waitcnt lgkmcnt(0)")
e(f"    v_pk_add_f32 v[{Y}:{Y+1}], v[{Y}:{Y+1}], v[{Y+2}:{Y+3}]"); e(f"    v_add_f32 v{Y}, v{Y}, v{Y+1}")
e(f"    v_cvt_pk_bf16_f32 v{Y}, v{Y}, v{Y}")
e(f"    buffer_store_short v{Y}, v{vT}, {s4(SOUT)}, s{sOO} offen")
if DIAG:
    e(f"    s_memrealtime s[{sTS}:{sTS+1}]"); e("    s_waitcnt lgkmcnt(0)"); e(f"    v_mov_b32 v{vA[0]}, s{sTS}")
    e(f"    s_lshl_b32 s{sT0}, s2, 6"); e(f"    s_add_u32 s{sT0}, s{sT0}, {WS_DIAG+24}"); e(f"    v_mov_b32 v{vA[0]+1}, 0")
    e("    s_mov_b64 exec, 1"); e(f"    buffer_store_dword v{vA[0]}, v{vA[0]+1}, {s4(SW)}, s{sT0} offen")
e("L_end:")
if PN: e("    s_waitcnt vmcnt(0)")
e("    s_endpgm")
e('.section .rodata,"a"'); e(".p2align 6"); e(f".amdhsa_kernel {NAME}_kernel")
e(f"  .amdhsa_next_free_vgpr {256+4*AV}"); e("  .amdhsa_next_free_sgpr 102"); e("  .amdhsa_accum_offset 256")
e("  .amdhsa_group_segment_fixed_size 0"); e("  .amdhsa_kernarg_size 104"); e("  .amdhsa_user_sgpr_count 2")
e("  .amdhsa_user_sgpr_kernarg_segment_ptr 1"); e("  .amdhsa_system_sgpr_workgroup_id_x 1"); e(".end_amdhsa_kernel")
txt = "\n".join(L) + "\n"
txt = txt.replace(f"; c*128 + g*32 + r*8", f"; c*128 + g*32 + r*8\n    v_add_u32 v{vOR}, {L_OP}, v{vOR}")
open(sys.argv[1], "w").write(txt)
```

```python
import sys
NAME = "concat_heads__gqa_block_cached__gqa_block_cached__decode"
opts = dict(a.split("=") for a in sys.argv[2:])
DIAG = int(opts.get("diag", 0)); D = int(opts.get("d", 16)); ORD = opts.get("o", "j"); ROT = int(opts.get("r", 1))
QW, QB, QG = [(7, 5, 3), (7, 3, 5), (3, 5, 7), (5, 3, 7), (3, 7, 5), (5, 7, 3)][int(opts.get("wqm", 0))]
MLB = int(opts.get("mlb", 4)); NSLOT = int(opts.get("ns", 20))
WQD = int(opts.get("wqd", 0)); AV = int(opts.get("av", 32)); P1 = opts.get("p1", "1:1"); NP = int(opts.get("np", 32))
WT = {"q": float(opts.get("wq", 1)), "o": float(opts.get("wo", 1)), "k": 1.0, "v": 1.0}
D1 = float(opts.get("d1", D)); D3 = float(opts.get("d3", D)); QPOL = opts.get("qp", "nt").replace("_", " "); OPOL = opts.get("op", "nt").replace("_", " ")
L = []
def e(s=""): L.append(s)
def brev(j): return int(f"{j:04b}"[::-1], 2)
def r4(b): return f"v[{b}:{b+3}]"
def s4(b): return f"s[{b}:{b+3}]"
hdr = open("cdna_kernels/%s.s.ref" % NAME).read().split("\n")
for ln in hdr:
    if ln.startswith("; @launch"):
        e("; @launch grid=(256,1,1) block=(256,1,1) lds=4608"); break
    e(ln)
e('.amdgcn_target "amdgcn-amd-amdhsa--gfx950"'); e(".text"); e(f".globl {NAME}_kernel"); e(".p2align 8")
e(f".type {NAME}_kernel,@function"); e(f"{NAME}_kernel:")
SX, SK, SV, SQ, SO, SW, SD, SOUT = 32, 36, 40, 44, 48, 52, 56, 84
sHEAD, sSPL, sPROB, sWAVE, sPID = 60, 61, 62, 63, 64
sT0, sT1, sT2 = 65, 66, 67
sKV, sRK, sRV, sWQ, sWO = 68, 69, 70, 71, 72
sLO, sHI, sDLO, sDHI = 73, 74, 75, 76
sM1, sM0 = 78, 80
sYS, sCY, sOO = 77, 82, 83
sTS = 88
EXP = int(opts.get("exp", 0))
RQ = int(opts.get("rq", 0)); RO = int(opts.get("ro", 0)); sQR, sOR = 30, 31
vKV, vWQ, vWO, vT, vT2 = 1, 2, 3, 4, 5
vM, vQ, vA, vD, vP = 6, 10, [14, 18], 22, 26
S = [30, 31]; T = [32, 33]; U = [34, 35]; Wd = [36, 37]
vOW, vOR, vYS, vCY, vCM, vRW, vML = 38, 39, 40, 41, 42, 43, 44
vR = 48; vB = 128
vXR, vXD = (44, 30) if WQD else (vB, vB + 4)
vCNT, vMX = 30, 31
L_QP, L_M, L_OP, L_RED = 0, 2048, 2304, 4352; L_CC = 2048 + 64
WS_ML = 512 * 1024; WS_DIAG = 1024 * 1024
DPP = "row_mask:0xf bank_mask:"
def stamp(i):
    if DIAG: e(f"    s_memrealtime s[{sTS+2*i}:{sTS+2*i+1}]")

nissued = 0; done = -1
def vm(txt):
    global nissued
    e("    " + txt); nissued += 1; return nissued - 1
def wait(op):
    global done
    if op > done:
        e(f"    s_waitcnt vmcnt({nissued - 1 - op})"); done = op
free = list(range(NSLOT)); slot = {}; opid = {}

def mix(a, b, ra, rb):
    out = []; a = list(a); b = list(b)
    while a or b:
        out += a[:ra]; a = a[ra:]; out += b[:rb]; b = b[rb:]
    return out
q = [("q", j) for j in range(32)]; k = [("k", j) for j in range(64)]; v = [("v", j) for j in range(64)]; w = [("o", j) for j in range(32)]
ra, rb = map(int, P1.split(":"))
seq = mix(q, v[:NP], ra, rb) if ORD.islower() else mix(v[:NP], q, rb, ra)
NP1 = len(seq)
o_ = ORD.lower()
if o_ == "h": seq += mix(w, k, 1, 1)
elif o_ == "j": seq += mix(k, w, 2, 1)
elif o_ == "k": seq += k[:32] + mix(w, k[32:], 1, 1)
NP2 = len(seq)
seq += v[NP:]

def issue(t, j):
    if t == "v" and j < AV: dst = f"a[{4*j}:{4*j+3}]"
    elif t == "q" and WQD:
        slot[(t, j)] = vB + 4 * j; dst = r4(slot[(t, j)])
    else:
        slot[(t, j)] = vR + 4 * free.pop(0); dst = r4(slot[(t, j)])
    if t == "q":
        opid[(t, j)] = vm(f"buffer_load_dwordx4 {dst}, v{vWQ}, {s4(SQ)}, s{sWQ} offen {QPOL}")
        if RQ and j % 8 == 7:
            if j < 31:
                e(f"    s_add_u32 s{sWQ}, s{sWQ}, {((1 << QB) - 7)*8192}"); e(f"    s_and_b32 s{sWQ}, s{sWQ}, {hex(3 << (13+QB))}"); e(f"    s_add_u32 s{sWQ}, s{sWQ}, s{sQR}")
        elif j < 31: e(f"    s_add_u32 s{sWQ}, s{sWQ}, {8192 if j % 8 < 7 else ((1 << QB) - 7)*8192}")
    elif t == "o":
        opid[(t, j)] = vm(f"buffer_load_dwordx4 {dst}, v{vWO}, {s4(SO)}, s{sWO} offen offset:{1024*(j%4)} {OPOL}")
        if j % 4 == 3 and j < 31: e(f"    s_add_u32 s{sWO}, s{sWO}, {4096 if j % 8 < 7 else 28*1024}")
        if RO and j % 8 == 7 and j < 31:
            e(f"    s_and_b32 s{sWO}, s{sWO}, 0x18000"); e(f"    s_add_u32 s{sWO}, s{sWO}, s{sOR}")
    else:
        s = sRK if t == "k" else sRV
        e(f"    s_add_u32 s{sT2}, s{sKV}, s{s}")
        opid[(t, j)] = vm(f"buffer_load_dwordx4 {dst}, v{vKV}, {s4(SK if t == 'k' else SV)}, s{sT2} offen nt")
        if j < 63:
            e(f"    s_add_u32 s{s}, s{s}, 1024"); e(f"    s_and_b32 s{s}, s{s}, 0xfc00")
def release(t, j):
    if (t == "q" and WQD) or (t == "v" and j < AV): return
    free.append((slot[(t, j)] - vR) // 4)
ni = 0; nc = 0
FB = int(opts.get("fb", 0)); FR = int(opts.get("fr", 64)); FK = int(opts.get("fk", 4)); FD = float(opts.get("fd", 18)); FL = int(opts.get("fl", 4))
CP = [int(c) for c in opts.get("cp", "16,32,48").split(",") if c]
vRK, vRA, vFL, vZ = 44, 45, 46, 47; L_FB = 2048 + 32
fb_on = False; fb_mark = None; fb_rd = None; nlab = 0
IF = int(opts.get("if", 0)); BQ = int(opts.get("bq", 0)); BM = int(opts.get("bm", 0)); boost = 0
def fill():
    global ni
    while ni < len(seq):
        t, j = seq[ni]
        W = D1 if ni < NP1 else (D if ni < NP2 else D3)
        if fb_on: W = FD
        if sum(WT[x[0]] for x in seq[nc:ni+1]) > W + boost + 1e-6 or ni - nc >= 56: break
        if not ((t == "q" and WQD) or (t == "v" and j < AV)) and not free: break
        if fb_on and not boost:
            global nlab
            e(f"    s_cbranch_vccz L_t{nlab}"); e(f"    s_waitcnt vmcnt({max(nissued - 1 - done - FK, 0)})"); e(f"L_t{nlab}:"); nlab += 1
        issue(t, j); ni += 1

stamp(0)
e("    s_cmp_ge_u32 s2, 256"); e("    s_cbranch_scc1 L_end")
e("    s_load_dwordx16 s[4:19], s[0:1], 0"); e("    s_load_dwordx8 s[20:27], s[0:1], 64"); e("    s_load_dwordx2 s[28:29], s[0:1], 96")
e("    v_lshrrev_b32 v4, 6, v0"); e("    v_and_b32 v0, 63, v0                  ; lane")
e(f"    v_readfirstlane_b32 s{sWAVE}, v4")
e(f"    s_lshr_b32 s{sT0}, s2, 5"); e(f"    s_and_b32 s{sT1}, s2, 7"); e(f"    s_lshr_b32 s{sPROB}, s2, 7")
HM = int(opts.get("hm", 0))
if HM == 1:
    e(f"    s_add_u32 s{sT1}, s{sT1}, s{sT0}"); e(f"    s_and_b32 s{sT1}, s{sT1}, 7")
if HM >= 4:
    pm = {4: "51734062", 5: "15734062", 6: "51023467", 7: "57130462"}[HM]
    e(f"    s_lshl_b32 s{sT1}, s{sT1}, 2"); e(f"    s_lshr_b32 s{sT1}, 0x{pm[::-1]}, s{sT1}"); e(f"    s_and_b32 s{sT1}, s{sT1}, 7")
if HM == 2:
    e(f"    s_and_b32 s{sT0}, s{sT0}, 3"); e(f"    s_lshl_b32 s{sT1}, s{sT1}, 2")
elif HM == 3:
    e(f"    s_mul_i32 s{sT2}, s{sT0}, 3"); e(f"    s_add_u32 s{sT1}, s{sT1}, s{sT2}"); e(f"    s_and_b32 s{sT1}, s{sT1}, 7")
if HM != 2:
    e(f"    s_and_b32 s{sT0}, s{sT0}, 3"); e(f"    s_lshl_b32 s{sT0}, s{sT0}, 3")
e(f"    s_or_b32 s{sHEAD}, s{sT0}, s{sT1}          ; head 0..31")
e(f"    s_bfe_u32 s{sSPL}, s2, 0x20003            ; split 0..3")
e(f"    v_lshlrev_b32 v{vKV}, 4, v0              ; lane*16")
e(f"    v_lshrrev_b32 v{vT}, 4, v0               ; g")
e(f"    v_and_b32 v{vT2}, 15, v0                 ; i")
e(f"    v_lshlrev_b32 v{vT2}, 4, v{vT2}")
e(f"    v_lshl_add_u32 v{vWQ}, v{vT}, {13+QG}, v{vT2}")
e(f"    v_lshl_add_u32 v{vWO}, v{vT}, 13, v{vT2}     ; g*8*1024 + i*16")
if RQ: e(f"    v_add_u32 v{vD}, s{sSPL}, v0"); e(f"    v_and_b32 v{vD}, 3, v{vD}")
else: e(f"    v_and_b32 v{vD}, 3, v0")
e(f"    v_lshlrev_b32 v{vD}, {QB+1}, v{vD}")
e(f"    v_lshl_add_u32 v{vD}, v{vT}, {QG+1}, v{vD}")
e(f"    s_lshl_b32 s{sT0}, s{sWAVE}, {QW+1}             ; x soffset")
e(f"    s_lshl_b32 s{sWQ}, s{sWAVE}, {13+QW}"); e(f"    s_lshl_b32 s{sT1}, s{sHEAD}, 8"); e(f"    s_add_u32 s{sWQ}, s{sWQ}, s{sT1}")
if RQ: e(f"    s_mov_b32 s{sQR}, s{sWQ}"); e(f"    s_lshl_b32 s{sT1}, s{sSPL}, {13+QB}"); e(f"    s_add_u32 s{sWQ}, s{sWQ}, s{sT1}")
e(f"    s_lshl_b32 s{sKV}, s{sHEAD}, 20"); e(f"    s_lshl_b32 s{sT1}, s{sSPL}, 18"); e(f"    s_add_u32 s{sKV}, s{sKV}, s{sT1}")
e(f"    s_lshl_b32 s{sT1}, s{sWAVE}, 16"); e(f"    s_add_u32 s{sKV}, s{sKV}, s{sT1}")
a_, b_, c_ = {1: (3, 4, 0), 4: (3, 4, 1), 7: (5, 20, 0), 2: (1, 4, 0), 3: (3, 5, 0)}[ROT]
e(f"    s_lshl_b32 s{sRK}, s{sPROB}, {a_}"); e(f"    s_add_u32 s{sRK}, s{sRK}, s{sHEAD}")
e(f"    s_mul_i32 s{sT1}, s{sWAVE}, {b_}"); e(f"    s_add_u32 s{sRK}, s{sRK}, s{sT1}")
if c_: e(f"    s_add_u32 s{sRK}, s{sRK}, s{sSPL}")
e(f"    s_and_b32 s{sRK}, s{sRK}, 63"); e(f"    s_lshl_b32 s{sRK}, s{sRK}, 10"); e(f"    s_mov_b32 s{sRV}, s{sRK}")
e(f"    s_lshl_b32 s{sWO}, s{sHEAD}, 17"); e(f"    s_lshl_b32 s{sT1}, s{sWAVE}, 8"); e(f"    s_add_u32 s{sWO}, s{sWO}, s{sT1}")
if RO: e(f"    s_mov_b32 s{sOR}, s{sWO}"); e(f"    s_lshl_b32 s{sT1}, s{sSPL}, 15"); e(f"    s_add_u32 s{sWO}, s{sWO}, s{sT1}")
for b, n in ((SX, 1024), (SQ, 0x400000), (SK, 0x2000000), (SV, 0x2000000), (SO, 0x400000), (SW, 0x200000), (SD, 256), (SOUT, 2048)):
    e(f"    s_mov_b32 s{b+2}, {n}"); e(f"    s_mov_b32 s{b+3}, 0x20000")
CL = int(opts.get("cl", 0)); CPOL = opts.get("clp", "sc1").replace("_", " ")
CLK = CL > 64; vCA, vCD = (vA[1], vA[0]) if CLK else (vQ, vP)
def clear_prep():
    e(f"    s_lshl_b32 s{sPID}, s{sPROB}, 5"); e(f"    s_add_u32 s{sPID}, s{sPID}, s{sHEAD}")
    e(f"    s_lshl_b32 s{sPID}, s{sPID}, 2"); e(f"    s_add_u32 s{sPID}, s{sPID}, s{sSPL}")
    e(f"    s_lshl_b32 s{sPID}, s{sPID}, 2"); e(f"    s_add_u32 s{sPID}, s{sPID}, s{sWAVE}")
    e(f"    s_lshl_b32 s{sYS}, s{sPID}, 9"); e(f"    s_lshl_b32 s{sPID}, s{sPID}, 4"); e(f"    s_add_u32 s{sPID}, s{sPID}, {WS_ML}")
    if not CLK: clear_v()
def clear_v():
    e(f"    v_add_u32 v{vCA}, s{sYS}, v{vKV}")
    for r in range(4): e(f"    v_mov_b32 v{vCD+r}, -1")
    e(f"    v_writelane_b32 v{vCA}, s{sPID}, 32")
clear_op = None
def clear_store():
    global clear_op
    if CLK: assert seq[nc-1][0] in "ko" and not pv_on; clear_v()
    e(f"    s_mov_b32 exec_hi, {0 if EXP & 16 else 1}")
    if EXP & 32: e("    s_mov_b32 exec_lo, 0")
    if EXP & 64: e("    s_mov_b32 exec_lo, 0xff")
    if not EXP & 2: clear_op = vm(f"buffer_store_dwordx4 {r4(vCD)}, v{vCA}, {s4(SW)}, 0 offen {CPOL}")
    else: clear_op = -1
    e(f"    s_mov_b32 exec_hi, -1")
    if EXP & 96: e("    s_mov_b32 exec_lo, -1")
if CL < 0: clear_prep()
e(f"    s_cmp_eq_u32 s{sPROB}, 0"); e("    s_waitcnt lgkmcnt(0)")
if CL == -1: e(f"    s_mov_b64 s[{SW}:{SW+1}], s[28:29]"); clear_store()
for b, x, y in ((SX, 4, 14), (SQ, 10, 20), (SV, 8, 18), (SK, 6, 16), (SO, 12, 22)):
    e(f"    s_cselect_b64 s[{b}:{b+1}], s[{x}:{x+1}], s[{y}:{y+1}]")
x_op = vm(f"buffer_load_dwordx4 {r4(vXR)}, v{vD}, {s4(SX)}, s{sT0} offen")
if CL < -1: e(f"    s_mov_b64 s[{SW}:{SW+1}], s[28:29]"); clear_store()
fill()
stamp(1)
if CL >= 0: e(f"    s_mov_b64 s[{SW}:{SW+1}], s[28:29]")
e(f"    s_mov_b64 s[{SD}:{SD+1}], s[26:27]"); e(f"    s_mov_b64 s[{SOUT}:{SOUT+1}], s[24:25]")
if CL >= 0: clear_prep()
if CL == 0: clear_store()
e(f"    v_and_b32 v{vT2}, 1, v0"); e(f"    v_lshlrev_b32 v{vT2}, 4, v{vT2}"); e(f"    s_mov_b32 s{sT0}, 0xffff")
e(f"    v_lshlrev_b32 v{vT2}, v{vT2}, s{sT0}"); e(f"    v_bfe_u32 v{vD}, v0, 1, 2")
for r in range(4):
    e(f"    v_cmp_eq_u32 vcc, {r}, v{vD}"); e("    s_nop 1"); e(f"    v_cndmask_b32 v{vM+r}, 0, v{vT2}, vcc")
for s, c in ((sDLO, 0x01000100), (sDHI, 0x03020302), (sLO, 0x05040100), (sHI, 0x07060302), (sM1, 0xcccccccc), (sM1+1, 0xcccccccc), (sM0, 0xaaaaaaaa), (sM0+1, 0xaaaaaaaa)):
    e(f"    s_mov_b32 s{s}, {hex(c)}")
e(f"    v_and_b32 v{vT2}, 15, v0"); e(f"    v_lshlrev_b32 v{vYS}, 5, v{vT2}"); e(f"    v_and_b32 v{vD}, 16, v0")
e(f"    v_add_u32 v{vYS}, v{vYS}, v{vD}            ; n*32 + h*16")
e(f"    s_lshl_b32 s{sT0}, s{sWAVE}, 9"); e(f"    v_add_u32 v{vOW}, s{sT0}, v{vYS}")
e(f"    v_lshrrev_b32 v{vOR}, 2, v{vT2}")
if RO: e(f"    v_add_u32 v{vOR}, s{sSPL}, v{vOR}"); e(f"    v_and_b32 v{vOR}, 3, v{vOR}")
e(f"    v_lshlrev_b32 v{vOR}, 7, v{vOR}"); e(f"    v_lshl_add_u32 v{vOR}, v{vT}, 5, v{vOR}")
e(f"    v_and_b32 v{vD}, 3, v0"); e(f"    v_lshl_add_u32 v{vOR}, v{vD}, 3, v{vOR}     ; c*128 + g*32 + r*8")
e(f"    v_lshrrev_b32 v{vD+1}, 2, v0"); e(f"    s_lshl_b32 s{sT0}, s{sPROB}, 2"); e(f"    s_add_u32 s{sT0}, s{sT0}, s{sWAVE}")
e(f"    s_lshl_b32 s{sT0}, s{sT0}, 5"); e(f"    v_add_u32 v{vD+1}, s{sT0}, v{vD+1}")
e(f"    v_lshlrev_b32 v{vD+2}, 4, v{vD}"); e(f"    v_lshl_add_u32 v{vCY}, v{vD+1}, 11, v{vD+2}"); e(f"    v_lshl_add_u32 v{vCM}, v{vD+1}, 6, v{vD+2}")
e(f"    s_lshl_b32 s{sCY}, s{sHEAD}, 6"); e(f"    s_lshl_b32 s{sT0}, s{sWAVE}, 2")
e(f"    v_lshl_add_u32 v{vRW}, v{vD}, 2, v{vT}"); e(f"    v_lshl_add_u32 v{vRW}, v{vRW}, 4, s{sT0}")
e(f"    s_lshl_b32 s{sOO}, s{sPROB}, 10"); e(f"    s_lshl_b32 s{sT1}, s{sHEAD}, 5"); e(f"    s_add_u32 s{sOO}, s{sOO}, s{sT1}")

def row_reduce(op, dst, src):
    e("    s_nop 1"); e(f"    {op}_dpp v{dst}, v{src}, v{src} row_ror:8 {DPP}0xf")
    for n in (4, 2, 1):
        e("    s_nop 1"); e(f"    {op}_dpp v{dst}, v{dst}, v{dst} row_ror:{n} {DPP}0xf")
def xrow_reduce(op, dst, tmp):
    for sw in ("16", "32"):
        e(f"    v_mov_b32 v{tmp}, v{dst}"); e("    s_nop 1")
        e(f"    v_permlane{sw}_swap_b32 v{dst}, v{tmp}"); e(f"    {op} v{dst}, v{dst}, v{tmp}")
nm = 0
def bc_mfma(src, lane, data, first, op=None, hook=True):
    global nm
    A = vA[nm % 2]; nm += 1
    for r in range(4): e(f"    v_and_b32_dpp v{A+r}, v{src}, v{vM+r} row_newbcast:{lane} {DPP}0xf")
    n0 = len(L)
    if op is not None: wait(op)
    if IF and hook: fill()
    if len(L) < n0 + 2: e("    s_nop 0" if len(L) > n0 else "    s_nop 1")
    e(f"    v_mfma_f32_16x16x32_bf16 {r4(vD)}, {r4(A)}, {data}, {'0' if first else r4(vD)}")
def write_partial(off):
    e("    s_mov_b32 exec_hi, 0"); e("    s_nop 6")
    e(f"    ds_write_b128 v{vOW}, {r4(vD)} offset:{off}")
    e("    s_mov_b32 exec_hi, -1"); e("    s_waitcnt lgkmcnt(0)"); e("    s_barrier")

parked = list(range(NP)); pv_on = False; pv_first = True
def pv(j):
    global pv_first
    data = f"a[{4*j}:{4*j+3}]" if j < AV else r4(slot[("v", j)])
    bc_mfma(vP + j // 16, brev(j % 16), data, pv_first, opid[("v", j)], j >= NP); pv_first = False

def q_stage():
    assert CLK or (clear_op is not None and done >= clear_op)
    if FB:
        assert WQD
        e(f"    v_mov_b32 v{vZ}, 0"); e(f"    v_mov_b32 v{vFL}, {FR}"); e(f"    ds_write_b32 v{vZ}, v{vFL} offset:{L_FB}")
    if CLK: e(f"    v_mov_b32 v{vT2}, 0"); e(f"    ds_write_b32 v{vT2}, v{vT2} offset:{L_CC}")
    write_partial(L_QP)
    e(f"    v_and_b32 v{vT}, 15, v0"); e(f"    v_lshlrev_b32 v{vT}, 5, v{vT}")
    X = vB
    for ww in range(4):
        e(f"    ds_read_b128 {r4(X+8*ww)}, v{vT} offset:{L_QP+512*ww}"); e(f"    ds_read_b128 {r4(X+8*ww+4)}, v{vT} offset:{L_QP+512*ww+16}")
    if not CLK: e(f"    s_cmp_lg_u32 s{sWAVE}, 0"); e("    s_cbranch_scc1 L_noadd")
    if CLK: pass
    elif FB:
        global fb_mark
        e(f"    s_lshl_b32 s{sT0}, s{sPROB}, 7"); e(f"    v_mov_b32 v{vRA}, s{sT0}"); e(f"    v_mov_b32 v{vRK}, 1")
        e("    s_mov_b64 exec, 1"); e(f"    buffer_atomic_add v{vRK}, v{vRA}, {s4(SD)}, 0 offen sc0 sc1"); e("    s_mov_b64 exec, -1")
        fb_mark = nissued
    else:
        e(f"    s_lshl_b32 s{sT0}, s{sPROB}, 7"); e(f"    v_mov_b32 v{vT2}, s{sT0}"); e(f"    v_mov_b32 v{vD}, 1")
        if not EXP & 1: e("    s_mov_b64 exec, 1"); e(f"    buffer_atomic_add v{vD}, v{vT2}, {s4(SD)}, 0 offen sc1"); e("    s_mov_b64 exec, -1")
    if not CLK: e("L_noadd:")
    e("    s_waitcnt lgkmcnt(4)")
    for r in range(0, 8, 2): e(f"    v_pk_add_f32 v[{X+r}:{X+r+1}], v[{X+r}:{X+r+1}], v[{X+8+r}:{X+9+r}]")
    e("    s_waitcnt lgkmcnt(0)")
    for r in range(0, 8, 2): e(f"    v_pk_add_f32 v[{X+16+r}:{X+17+r}], v[{X+16+r}:{X+17+r}], v[{X+24+r}:{X+25+r}]")
    for r in range(0, 8, 2): e(f"    v_pk_add_f32 v[{X+r}:{X+r+1}], v[{X+r}:{X+r+1}], v[{X+16+r}:{X+17+r}]")
    for r in range(4): e(f"    v_cvt_pk_bf16_f32 v{vQ+r}, v{X+2*r}, v{X+2*r+1}")
    stamp(2)

def max_stage():
    global pv_on
    e(f"    v_max3_f32 v{vT2}, v{vP}, v{vP+1}, v{vP+2}"); e(f"    v_max_f32 v{vT2}, v{vT2}, v{vP+3}")
    row_reduce("v_max_f32", vT, vT2); xrow_reduce("v_max_f32", vT, vT2)
    e(f"    s_lshl_b32 s{sT0}, s{sWAVE}, 2"); e(f"    v_mov_b32 v{vT2}, s{sT0}")
    e(f"    ds_write_b32 v{vT2}, v{vT} offset:{L_M}"); e(f"    v_mov_b32 v{vT2}, 0")
    e("    s_waitcnt lgkmcnt(0)"); e("    s_barrier")
    e(f"    ds_read_b128 {r4(32)}, v{vT2} offset:{L_M}")
    e(f"    s_cmp_lg_u32 s{sSPL}, 0"); e("    s_cbranch_scc1 L_nocnt")
    e(f"    s_lshl_b32 s{sT0}, s{sPROB}, 7")
    if not EXP & 8: e(f"    buffer_load_dword v{vCNT}, v{vT2}, {s4(SD)}, s{sT0} offen sc1")
    e("L_nocnt:")
    e("    s_waitcnt lgkmcnt(0)")
    e(f"    v_max3_f32 v{vMX}, v32, v33, v34"); e(f"    v_max_f32 v{vMX}, v{vMX}, v35")
    for g in range(4): e(f"    v_sub_f32 v{vP+g}, v{vP+g}, v{vMX}")
    for g in range(4): e(f"    v_mul_f32 v{vP+g}, 0x3fb8aa3b, v{vP+g}")
    for g in range(4): e(f"    v_exp_f32 v{vP+g}, v{vP+g}")
    e("    s_nop 0")
    e(f"    v_add_f32 v32, v{vP}, v{vP+1}"); e(f"    v_add_f32 v33, v{vP+2}, v{vP+3}"); e(f"    v_add_f32 v32, v32, v33")
    for g in range(4): e(f"    v_cvt_pk_bf16_f32 v{vP+g}, v{vP+g}, v{vP+g}")
    row_reduce("v_add_f32", 33, 32); xrow_reduce("v_add_f32", 33, 34)
    e(f"    v_min_u32 v32, -2, v{vMX}"); e(f"    v_min_u32 v33, -2, v33")
    e("    s_mov_b64 exec, 1")
    if not EXP & 4: vm(f"buffer_store_dwordx2 v[32:33], v{vT2}, {s4(SW)}, s{sPID} offen sc1")
    e("    s_mov_b64 exec, -1")
    stamp(3)
    pv_on = True

def consume(t, j):
    op = opid[(t, j)]
    if t == "q":
        if j == 0:
            wait(x_op)
            for r in range(8): e(f"    v_perm_b32 v{vXD+r}, v{vXR+r//2}, v{vXR+r//2}, s{sDHI if r % 2 else sDLO}")
            e("    s_nop 1")
        bc_mfma(vXD + j % 8, j // 8, r4(slot[(t, j)]), j == 0, op); release(t, j)
        if j == 31: q_stage()
    elif t == "o":
        wait(op)
        if IF: fill()
        if j % 2:
            a, b = slot[(t, j-1)], slot[(t, j)]
            for el in range(8):
                e(f"    v_perm_b32 v{vB + 32*(j//8) + 4*el + (j%8)//2}, v{b+el//2}, v{a+el//2}, s{sHI if el % 2 else sLO}")
            release(t, j-1); release(t, j)
    elif t == "k":
        wait(op); kb = slot[(t, j)]; s = S[j % 2]
        if IF: fill()
        e(f"    v_dot2_f32_bf16 v{s}, v{kb}, v{vQ}, 0")
        for r in range(1, 4): e(f"    v_dot2_f32_bf16 v{s}, v{kb+r}, v{vQ+r}, v{s}")
        release(t, j)
        if j % 2 == 1:
            tt = T[(j//2) % 2]
            e(f"    v_add_f32_dpp v{tt}, v{S[0]}, v{S[0]} row_ror:8 {DPP}0x3"); e("    s_nop 1")
            e(f"    v_add_f32_dpp v{tt}, v{S[1]}, v{S[1]} row_ror:8 {DPP}0xc")
        if j % 4 == 3:
            u = U[(j//4) % 2]
            e(f"    v_add_f32_dpp v{u}, v{T[0]}, v{T[0]} row_half_mirror {DPP}0x5"); e("    s_nop 0")
            e(f"    v_add_f32_dpp v{u}, v{T[1]}, v{T[1]} row_half_mirror {DPP}0xa")
        if j % 8 == 7:
            e(f"    v_add_f32_dpp v{vT}, v{U[0]}, v{U[0]} quad_perm:[2,3,0,1] {DPP}0xf"); e("    s_nop 0")
            e(f"    v_add_f32_dpp v{vT2}, v{U[1]}, v{U[1]} quad_perm:[2,3,0,1] {DPP}0xf")
            e(f"    v_cndmask_b32 v{Wd[(j//8) % 2]}, v{vT}, v{vT2}, s[{sM1}:{sM1+1}]")
        if j % 16 == 15:
            p = vP + j // 16
            e(f"    v_add_f32_dpp v{vT}, v{Wd[0]}, v{Wd[0]} quad_perm:[1,0,3,2] {DPP}0xf"); e("    s_nop 0")
            e(f"    v_add_f32_dpp v{vT2}, v{Wd[1]}, v{Wd[1]} quad_perm:[1,0,3,2] {DPP}0xf")
            e(f"    v_cndmask_b32 v{p}, v{vT}, v{vT2}, s[{sM0}:{sM0+1}]")
            e(f"    v_cvt_pk_bf16_f32 v{p}, v{p}, v{p}"); e(f"    v_and_b32 v{p}, 0xffff0000, v{p}")
            e(f"    v_mul_f32 v{p}, 0x3db504f3, v{p}")
            e(f"    v_cvt_pk_bf16_f32 v{p}, v{p}, v{p}"); e(f"    v_and_b32 v{p}, 0xffff0000, v{p}")
        if j == 63: max_stage()
    else:
        if j < NP: wait(op)
        else:
            pv(j); release(t, j)
def ml_loads():
    for t in range(2): e(f"    buffer_load_dwordx2 v[{vML+2*t}:{vML+2*t+1}], v{vCM}, {s4(SW)}, s{sT1} offen offset:{1024*t} sc1")

N = len(seq); cnt_op = None; cc_st = 0
while nc < N:
    was = pv_on
    nc += 1
    boost = BQ if seq[nc-1] == ("q", 31) else (BM if seq[nc-1] == ("k", 63) else 0)
    consume(*seq[nc-1])
    boost = 0
    if CL > 0 and nc == CL: clear_store()
    if CLK and cc_st == 1:
        assert not pv_on
        e("    s_waitcnt lgkmcnt(0)"); e(f"    v_readfirstlane_b32 s{sT0}, v{vA[0]+1}"); e(f"    s_cmp_lg_u32 s{sT0}, 3"); e("    s_cbranch_scc1 L_noadd")
        e(f"    s_lshl_b32 s{sT0}, s{sPROB}, 7"); e("    s_mov_b64 exec, 1")
        if not EXP & 1: e(f"    buffer_atomic_add v{vA[0]}, v{vA[1]}, {s4(SD)}, s{sT0} offen sc1")
        e("    s_mov_b64 exec, -1"); e("L_noadd:"); cc_st = 2; print("count at", nc, file=sys.stderr)
    if CLK and cc_st == 0 and clear_op is not None and done >= clear_op:
        e(f"    v_mov_b32 v{vA[0]}, 1"); e(f"    v_mov_b32 v{vA[1]}, 0"); e("    s_mov_b64 exec, 1")
        e(f"    ds_add_rtn_u32 v{vA[0]+1}, v{vA[1]}, v{vA[0]} offset:{L_CC}"); e("    s_mov_b64 exec, -1"); cc_st = 1
    if FB:
        if fb_rd is not None and nc == fb_rd + 1:
            e("    s_waitcnt lgkmcnt(0)"); e("    v_cmp_%s_u32 vcc, %d, v%d" % ("le" if int(opts.get("fi", 0)) else "gt", FR, vFL)); fb_on = True; fb_rd = None
        if fb_rd is not None and nc == fb_rd: e(f"    ds_read_b32 v{vFL}, v{vZ} offset:{L_FB}")
        if fb_mark is not None and done >= fb_mark:
            e(f"    s_cmp_lg_u32 s{sWAVE}, 0"); e(f"    s_cbranch_scc1 L_t{nlab}"); e("    s_mov_b64 exec, 1")
            e(f"    ds_write_b32 v{vZ}, v{vRK} offset:{L_FB}"); e("    s_mov_b64 exec, -1"); e(f"L_t{nlab}:"); nlab += 1
            fb_mark = None; fb_rd = nc + FL; print("rank shared at", nc, file=sys.stderr)
        if seq[nc-1][0] == "k" and seq[nc-1][1] in CP:
            assert fb_mark is None
            e(f"    s_cmp_lg_u32 s{sWAVE}, 0"); e(f"    s_cbranch_scc1 L_t{nlab}"); e(f"    v_mov_b32 v{vRK}, 1"); e("    s_mov_b64 exec, 1")
            e(f"    buffer_atomic_add v{vRK}, v{vRA}, {s4(SD)}, 0 offen offset:{4 + 4*CP.index(seq[nc-1][1])} sc0 sc1"); e("    s_mov_b64 exec, -1"); e(f"L_t{nlab}:"); nlab += 1
            fb_mark = nissued
    if pv_on and not was: cnt_op = nissued - 1
    fill()
    if pv_on and was:
        for _ in range(int(opts.get("pk", 2))):
            if parked: pv(parked.pop(0))
    if cnt_op is not None and (done >= cnt_op and ni >= N - MLB):
        cnt_op = None
        assert fb_mark is None and fb_rd is None
        assert nc < N and done < nissued - 1, "ml loads must precede the final vmcnt(0)"
        e(f"    s_cmp_lg_u32 s{sSPL}, 0"); e("    s_cbranch_scc1 L_noml")
        e("L_cnt:"); e(f"    v_readfirstlane_b32 s{sT0}, v{vCNT}"); e(f"    s_cmp_ge_u32 s{sT0}, {0 if EXP & 1 else 128}"); e("    s_cbranch_scc1 L_cntok")
        e(f"    s_lshl_b32 s{sT0}, s{sPROB}, 7"); e(f"    v_mov_b32 v{vT2}, 0")
        e(f"    buffer_load_dword v{vCNT}, v{vT2}, {s4(SD)}, s{sT0} offen sc1"); e("    s_waitcnt vmcnt(0)"); e("    s_branch L_cnt")
        e("L_cntok:"); e(f"    s_mov_b32 s{sT1}, {WS_ML}"); ml_loads(); e("L_noml:")
        print("ml loads at consume", nc, "issue", ni, "of", N, file=sys.stderr)
assert not parked and cnt_op is None and (cc_st == 2 or not CLK)
write_partial(L_OP)
stamp(4)
X = vR + 32; vY = vR
e(f"    ds_read2st64_b64 {r4(X)}, v{vOR} offset0:{0} offset1:{1}");
e(f"    ds_read2st64_b64 {r4(X+4)}, v{vOR} offset0:{2} offset1:{3}")
e("    s_waitcnt lgkmcnt(1)"); e(f"    v_pk_add_f32 v[{X}:{X+1}], v[{X}:{X+1}], v[{X+2}:{X+3}]")
e("    s_waitcnt lgkmcnt(0)"); e(f"    v_pk_add_f32 v[{X+4}:{X+5}], v[{X+4}:{X+5}], v[{X+6}:{X+7}]")
e(f"    v_pk_add_f32 v[{X}:{X+1}], v[{X}:{X+1}], v[{X+4}:{X+5}]")
e(f"    v_cvt_pk_bf16_f32 v{vT}, v{X}, v{X+1}"); e("    s_nop 1")
AC = X + 8
def amov(c, r): e(f"    v_mov_b32_dpp v{AC+4*c+r}, v{vT} row_newbcast:{4*c+r} {DPP}0xf")
for r in range(4): amov(0, r)
e("    s_nop 1")
for c in range(4):
    for el in range(8):
        e(f"    v_mfma_f32_16x16x32_bf16 {r4(vY+4*el)}, {r4(AC+4*c)}, {r4(vB+32*c+4*el)}, {'0' if c == 0 else r4(vY+4*el)}")
        if c < 3 and el < 4: amov(c+1, el)
e("    s_nop 3")
for r in range(4): e(f"    v_min_u32 v{X+r}, -2, v{vY+4*r}")
e("    s_mov_b32 exec_lo, 0xffff0000")
for r in range(4): e(f"    v_min_u32 v{X+r}, -2, v{vY+16+4*r}")
e("    s_mov_b64 exec, 0xffffffff" if 0 else "    s_mov_b32 exec_lo, -1"); e("    s_mov_b32 exec_hi, 0")
e(f"    buffer_store_dwordx4 {r4(X)}, v{vYS}, {s4(SW)}, s{sYS} offen sc1")
e("    s_mov_b32 exec_hi, -1")
stamp(5)
def diag_out():
    e(f"    s_cmp_lg_u32 s{sWAVE}, 0"); e("    s_cbranch_scc1 L_nodiag"); e("    s_waitcnt lgkmcnt(0)")
    for i in range(6): e(f"    v_writelane_b32 v{vB}, s{sTS+2*i}, {i}")
    e(f"    s_getreg_b32 s{sT0}, hwreg(HW_REG_XCC_ID)"); e(f"    v_writelane_b32 v{vB}, s{sT0}, 7")
    e(f"    s_lshl_b32 s{sT0}, s2, 6"); e(f"    s_add_u32 s{sT0}, s{sT0}, {WS_DIAG}"); e(f"    v_lshlrev_b32 v{vB+1}, 2, v0")
    e("    s_mov_b64 exec, 0xbf"); e(f"    buffer_store_dword v{vB}, v{vB+1}, {s4(SW)}, s{sT0} offen"); e("    s_mov_b64 exec, -1")
    e("L_nodiag:")
if DIAG: diag_out()
e(f"    s_cmp_lg_u32 s{sSPL}, 0"); e("    s_cbranch_scc1 L_end")
Y = vR + 48; F = vR + 56
e(f"    s_add_u32 s{sT2}, s{sCY}, 32768")
def y_loads():
    e(f"    buffer_load_dwordx4 {r4(Y)}, v{vCY}, {s4(SW)}, s{sCY} offen sc1"); e(f"    buffer_load_dwordx4 {r4(Y+4)}, v{vCY}, {s4(SW)}, s{sT2} offen sc1")
y_loads()
e("L_ml:")
e(f"    v_max3_u32 v{vT}, v{vML}, v{vML+1}, v{vML+2}"); e(f"    v_max_u32 v{vT}, v{vT}, v{vML+3}")
e(f"    v_cmp_eq_u32 vcc, -1, v{vT}"); e("    s_branch L_mlok" if EXP & 4 else "    s_cbranch_vccz L_mlok")
ml_loads(); e("    s_waitcnt vmcnt(0)"); e("    s_branch L_ml")
e("L_mlok:")
for n, first in ((4, 1), (8, 0)):
    for t in range(2): e(f"    v_max_f32_dpp v{F+t}, v{vML+2*t if first else F+t}, v{vML+2*t if first else F+t} row_ror:{n} {DPP}0xf")
    e("    s_nop 0")
for t in range(2): e(f"    v_sub_f32 v{F+t}, v{vML+2*t}, v{F+t}")
for t in range(2): e(f"    v_mul_f32 v{F+t}, 0x3fb8aa3b, v{F+t}")
for t in range(2): e(f"    v_exp_f32 v{F+t}, v{F+t}")
e("    s_nop 0")
for t in range(2): e(f"    v_mul_f32 v{F+2+t}, v{F+t}, v{vML+2*t+1}")
for n in (8, 4, 2, 1):
    e("    s_nop 0")
    for t in range(2): e(f"    v_add_f32_dpp v{F+2+t}, v{F+2+t}, v{F+2+t} row_ror:{n} {DPP}0xf")
for t in range(2): e(f"    v_rcp_f32 v{F+2+t}, v{F+2+t}")
e("    s_nop 0")
for t in range(2): e(f"    v_mul_f32 v{F+t}, v{F+t}, v{F+2+t}")
e("    s_branch L_chk")
e("L_poll:"); y_loads()
e("L_chk:"); e("    s_waitcnt vmcnt(0)")
e(f"    v_max3_u32 v{vT}, v{Y}, v{Y+1}, v{Y+2}"); e(f"    v_max3_u32 v{vT2}, v{Y+3}, v{Y+4}, v{Y+5}")
e(f"    v_max3_u32 v{vT}, v{vT}, v{Y+6}, v{Y+7}"); e(f"    v_max_u32 v{vT}, v{vT}, v{vT2}")
PN = int(opts.get("pn", 0)); PTH = int(opts.get("pth", 8))
if not PN:
    e(f"    v_cmp_eq_u32 vcc, -1, v{vT}"); e("    s_mov_b64 exec, vcc"); e("    s_cbranch_execnz L_poll")
else:
    e(f"    v_cmp_eq_u32 vcc, -1, v{vT}"); e(f"    s_bcnt1_i32_b64 s{sT0}, vcc"); e("    s_cbranch_scc0 L_done")
    e("    s_mov_b64 exec, vcc"); e(f"    s_cmp_gt_u32 s{sT0}, {PTH}"); e("    s_cbranch_scc1 L_poll")
    def pl(b):
        e(f"    buffer_load_dwordx4 {r4(vB+8*b)}, v{vCY}, {s4(SW)}, s{sCY} offen sc1"); e(f"    buffer_load_dwordx4 {r4(vB+8*b+4)}, v{vCY}, {s4(SW)}, s{sT2} offen sc1")
    for b in range(PN): pl(b)
    e("L_fast:")
    for b in range(PN):
        B = vB + 8*b
        e(f"    s_waitcnt vmcnt({2*PN-2})")
        e(f"    v_max3_u32 v{vT}, v{B}, v{B+1}, v{B+2}"); e(f"    v_max3_u32 v{vT2}, v{B+3}, v{B+4}, v{B+5}")
        e(f"    v_max3_u32 v{vT}, v{vT}, v{B+6}, v{B+7}"); e(f"    v_max_u32 v{vT}, v{vT}, v{vT2}")
        e(f"    v_cmp_ne_u32 vcc, -1, v{vT}"); e(f"    s_cbranch_vccz L_skip{b}")
        e(f"    s_andn2_b64 s[{sM1}:{sM1+1}], exec, vcc"); e("    s_mov_b64 exec, vcc")
        for r in range(0, 8, 2): e(f"    v_pk_mov_b32 v[{Y+r}:{Y+r+1}], v[{B+r}:{B+r+1}], v[{B+r}:{B+r+1}] op_sel:[0,1]")
        e(f"    s_mov_b64 exec, s[{sM1}:{sM1+1}]"); e("    s_cbranch_execz L_done")
        e(f"L_skip{b}:"); pl(b)
    e("    s_branch L_fast")
    e("L_done:")
e("    s_mov_b64 exec, -1")
for r in range(4): e(f"    v_mul_f32 v{Y+r}, v{Y+r}, v{F}")
for r in range(4): e(f"    v_fmac_f32 v{Y+r}, v{Y+4+r}, v{F+1}")
e("    s_nop 0")
e(f"    v_permlane16_swap_b32 v{Y}, v{Y+1}"); e(f"    v_permlane16_swap_b32 v{Y+2}, v{Y+3}")
e(f"    v_add_f32 v{Y}, v{Y}, v{Y+1}"); e(f"    v_add_f32 v{Y+2}, v{Y+2}, v{Y+3}"); e("    s_nop 1")
e(f"    v_permlane32_swap_b32 v{Y}, v{Y+2}"); e(f"    v_add_f32 v{Y}, v{Y}, v{Y+2}")
for n in (4, 8):
    e("    s_nop 1"); e(f"    v_add_f32_dpp v{Y}, v{Y}, v{Y} row_ror:{n} {DPP}0xf")
e(f"    ds_write_b32 v{vRW}, v{Y} offset:{L_RED}")
e(f"    v_lshlrev_b32 v{vT}, 1, v0")
e("    s_waitcnt lgkmcnt(0)"); e("    s_barrier")
e(f"    s_cmp_lg_u32 s{sWAVE}, 0"); e("    s_cbranch_scc1 L_end")
e("    s_mov_b64 exec, 0xffff")
e(f"    ds_read_b128 {r4(Y)}, v{vKV} offset:{L_RED}"); e("    s_waitcnt lgkmcnt(0)")
e(f"    v_pk_add_f32 v[{Y}:{Y+1}], v[{Y}:{Y+1}], v[{Y+2}:{Y+3}]"); e(f"    v_add_f32 v{Y}, v{Y}, v{Y+1}")
e(f"    v_cvt_pk_bf16_f32 v{Y}, v{Y}, v{Y}")
e(f"    buffer_store_short v{Y}, v{vT}, {s4(SOUT)}, s{sOO} offen")
if DIAG:
    e(f"    s_memrealtime s[{sTS}:{sTS+1}]"); e("    s_waitcnt lgkmcnt(0)"); e(f"    v_mov_b32 v{vA[0]}, s{sTS}")
    e(f"    s_lshl_b32 s{sT0}, s2, 6"); e(f"    s_add_u32 s{sT0}, s{sT0}, {WS_DIAG+24}"); e(f"    v_mov_b32 v{vA[0]+1}, 0")
    e("    s_mov_b64 exec, 1"); e(f"    buffer_store_dword v{vA[0]}, v{vA[0]+1}, {s4(SW)}, s{sT0} offen")
e("L_end:")
if PN: e("    s_waitcnt vmcnt(0)")
e("    s_endpgm")
e('.section .rodata,"a"'); e(".p2align 6"); e(f".amdhsa_kernel {NAME}_kernel")
e(f"  .amdhsa_next_free_vgpr {256+4*AV}"); e("  .amdhsa_next_free_sgpr 102"); e("  .amdhsa_accum_offset 256")
e("  .amdhsa_group_segment_fixed_size 0"); e("  .amdhsa_kernarg_size 104"); e("  .amdhsa_user_sgpr_count 2")
e("  .amdhsa_user_sgpr_kernarg_segment_ptr 1"); e("  .amdhsa_system_sgpr_workgroup_id_x 1"); e(".end_amdhsa_kernel")
txt = "\n".join(L) + "\n"
txt = txt.replace(f"; c*128 + g*32 + r*8", f"; c*128 + g*32 + r*8\n    v_add_u32 v{vOR}, {L_OP}, v{vOR}")
open(sys.argv[1], "w").write(txt)
```
